```python
import torch

def _softmax(x, axis=-1):
    return torch.softmax(x, dim=axis)
def _gelu(x):
    return torch.nn.functional.gelu(x, approximate="tanh")
def _silu(x):
    return torch.nn.functional.silu(x)
def _sigmoid(x):
    return torch.sigmoid(x)
def _layernorm(x, axis=-1, eps=1e-5):
    m = x.mean(dim=axis, keepdim=True)
    v = x.var(dim=axis, keepdim=True, unbiased=False)
    return (x - m) / torch.sqrt(v + eps)
def _scatter_add(tgt, idx, src, axis=0):
    return tgt.clone().index_add_(axis, idx, src)
def _segment_sum(src, seg, n):
    out = torch.zeros((n,) + src.shape[1:], dtype=src.dtype)
    return out.index_add_(0, seg, src)
def _pad(x, pw):
    flat = tuple(v for pair in reversed(pw) for v in pair)
    return torch.nn.functional.pad(x, flat)

kernel_name = 'gated_mix__ssm_conv_s5__dense_activation_squared_relu__prompt'

def setup_inputs():

    _w = (lambda a: (lambda t: t.to(torch.bfloat16) if t.is_floating_point() else t)(torch.as_tensor(a)))
    def _A_setup():
        B, S, D = 1, 2048, 640
        P = D
        Lambda_re = -0.5 * (lambda _x: torch.exp(torch.as_tensor(_x)))((lambda *s: torch.randn(*s, dtype=torch.bfloat16) * 0.4)(P))
        Lambda_im = (lambda *s: torch.randn(*s, dtype=torch.bfloat16) * 0.8)(P) * 1.0
        B_re = (lambda *s: torch.randn(*s, dtype=torch.bfloat16) * 0.4)(P, D) * (D ** -0.5)
        B_im = (lambda *s: torch.randn(*s, dtype=torch.bfloat16) * 0.8)(P, D) * (D ** -0.5)
        C_re = (lambda *s: torch.randn(*s, dtype=torch.bfloat16) * 0.4)(D, P) * (P ** -0.5)
        C_im = (lambda *s: torch.randn(*s, dtype=torch.bfloat16) * 0.4)(D, P) * (P ** -0.5)
        log_dt = (lambda *s: torch.randn(*s, dtype=torch.bfloat16) * 0.4)(P) * 0.3 - 2.0
        Dskip = (lambda *s: torch.randn(*s, dtype=torch.bfloat16) * 0.1)(D)
        return {
            "x": _w((lambda *s: torch.randn(*s, dtype=torch.bfloat16) * 0.05)(B, S, D)),
            "Lambda_re": _w(Lambda_re),
            "Lambda_im": _w(Lambda_im),
            "B_re": _w(B_re),
            "B_im": _w(B_im),
            "C_re": _w(C_re),
            "C_im": _w(C_im),
            "log_dt": _w(log_dt),
            "Dskip": _w(Dskip),
        }
    _A_in = _A_setup()

    def _B_setup():
        B, S, D, F = 1, 2048, 640, 1728
        return {
            "x": _w((lambda *s: torch.randn(*s, dtype=torch.bfloat16) * 0.05)(B, S, D)),
            "w1": _w((lambda *s: torch.randn(*s, dtype=torch.bfloat16) * 0.05)(D, F)),
            "b1": _w((lambda *s: torch.randn(*s, dtype=torch.bfloat16) * 0.05)(F)),
            "w2": _w((lambda *s: torch.randn(*s, dtype=torch.bfloat16) * 0.05)(F, D)),
            "b2": _w((lambda *s: torch.randn(*s, dtype=torch.bfloat16) * 0.05)(D)),
        }
    _B_in = _B_setup()

    return {
        "A_x": _A_in["x"],
        "A_Lambda_re": _A_in["Lambda_re"],
        "A_Lambda_im": _A_in["Lambda_im"],
        "A_B_re": _A_in["B_re"],
        "A_B_im": _A_in["B_im"],
        "A_C_re": _A_in["C_re"],
        "A_C_im": _A_in["C_im"],
        "A_log_dt": _A_in["log_dt"],
        "A_Dskip": _A_in["Dskip"],
        "B_x": _B_in["x"],
        "B_w1": _B_in["w1"],
        "B_b1": _B_in["b1"],
        "B_w2": _B_in["w2"],
        "B_b2": _B_in["b2"],
        "gate_w": _w((lambda *s: torch.randn(*s, dtype=torch.bfloat16) * 0.05)(640) * 16.0),
    }

def reference(A_x, A_Lambda_re, A_Lambda_im, A_B_re, A_B_im, A_C_re, A_C_im, A_log_dt, A_Dskip, B_x, B_w1, B_b1, B_w2, B_b2, gate_w):
    def _A_ref(x, Lambda_re, Lambda_im, B_re, B_im, C_re, C_im, log_dt, Dskip):
        Bsz, L, H = x.shape
        Lam = Lambda_re + 1j * Lambda_im
        Bmat = B_re + 1j * B_im
        Cmat = C_re + 1j * C_im
        dt = torch.exp(log_dt)
        Lam_bar = torch.exp(dt * Lam)
        B_bar = ((Lam_bar - 1.0) / Lam)[:, None] * Bmat
        Bu = torch.einsum("bld,pd->blp", x + 0j, B_bar)
        h = torch.zeros_like(Bu[:, 0, :])
        hs = []
        for t in range(L):
            h = Lam_bar[None, :] * h + Bu[:, t, :]
            hs.append(h)
        hseq = torch.stack(hs, 1)
        y = 2.0 * torch.einsum("blp,dp->bld", hseq, Cmat).real + x * Dskip[None, None, :]
        return y

    def _B_ref(x, w1, b1, w2, b2):
        h = torch.einsum("bsd,df->bsf", x, w1) + b1
        zero = torch.zeros_like(h)
        r = torch.where(h > zero, h, zero)
        h = r * r
        out = torch.einsum("bsf,fd->bsd", h, w2) + b2
        return out

    x = A_x
    g = _sigmoid((x * gate_w).sum(-1, keepdims=True))
    a = _A_ref(x, A_Lambda_re, A_Lambda_im, A_B_re, A_B_im, A_C_re, A_C_im, A_log_dt, A_Dskip)
    b = _B_ref(x, B_w1, B_b1, B_w2, B_b2)
    return g * a + (1 - g) * b
```

```python
class K:
    def __init__(self):
        self.L = []
    def e(self, s):
        for x in s.split("\n"):
            x = x.strip()
            if x:
                self.L.append(x)
    def label(self, n):
        self.L.append(n + ":")
    def text(self):
        return "\n".join(self.L) + "\n"
    def capture(self, fn):
        n = len(self.L)
        fn()
        out = self.L[n:]
        del self.L[n:]
        return out
    def interleave(self, main, fill, start=0, per=1, step=1):
        fi = 0
        for i, m in enumerate(main):
            self.L.append(m)
            if i >= start and (i - start) % step == 0:
                for _ in range(per):
                    if fi < len(fill):
                        f = fill[fi]; fi += 1
                        if isinstance(f, (list, tuple)):
                            self.L.extend(f)
                        else:
                            self.L.append(f)
        while fi < len(fill):
            f = fill[fi]; fi += 1
            if isinstance(f, (list, tuple)):
                self.L.extend(f)
            else:
                self.L.append(f)

def vr(b, n=4):
    return "v[%d:%d]" % (b, b + n - 1)
def sr(b, n=4):
    return "s[%d:%d]" % (b, b + n - 1)

KA = dict(x=0, lre=8, lim=16, bre=24, bim=32, cre=40, cim=48, logdt=56, dskip=64, bx=72, w1=80, b1=88, w2=96, b2=104, gw=112, out=120, dbg=128, ws=136)
SZ = dict(x=2621440, bre=819200, bim=819200, cre=819200, cim=819200, w1=2211840, w2=2211840, b1=3456, b2=1280, gw=1280, lre=1280, lim=1280, logdt=1280, dskip=1280, out=5242880)

WS_MIDF = 0
WS_MIDS = 8 << 20
WS_G    = 14 << 20
WS_E    = 15 << 20
WS_XCH  = 16 << 20
WS_SIZE = 64 << 20

def srd(k, s, ptr_s, size):
    k.e("s_mov_b32 s%d, s%d" % (s, ptr_s))
    k.e("s_and_b32 s%d, s%d, 0xffff" % (s + 1, ptr_s + 1))
    k.e("s_mov_b32 s%d, %d" % (s + 2, size))
    k.e("s_mov_b32 s%d, 0x20000" % (s + 3))

def kernel_desc(name, vgpr=256, sgpr=96, accum=256):
    return """.p2align 6
.amdhsa_kernel %s
  .amdhsa_next_free_vgpr %d
  .amdhsa_next_free_sgpr %d
  .amdhsa_accum_offset %d
  .amdhsa_group_segment_fixed_size 0
  .amdhsa_kernarg_size 144
  .amdhsa_user_sgpr_count 2
  .amdhsa_user_sgpr_kernarg_segment_ptr 1
  .amdhsa_system_sgpr_workgroup_id_x 1
  .amdhsa_float_denorm_mode_32 3
.end_amdhsa_kernel
""" % (name, vgpr, sgpr, accum)

def loader_seq(k, nst, N, LA, dma, next_stage, after_barrier=None, extra_vm=None, stamp=None):
    LA = min(LA, N)
    for s in range(nst):
        start = 0 if s == 0 else LA
        for i in range(start, N):
            dma(i)
            if stamp and s == 0 and i == 0: stamp(0)
        if stamp and s == 0: stamp(1)
        next_stage()
        if s + 1 < nst:
            for i in range(LA):
                dma(i)
            if stamp and s == 0: stamp(2)
            k.e("s_waitcnt vmcnt(%d)" % LA)
        else:
            k.e("s_waitcnt vmcnt(0)")
        if stamp and s == 0: stamp(3)
        k.e("s_barrier")
        if stamp and s < 4: stamp(4 + s)
        if after_barrier is not None:
            after_barrier(s)

def ld_stamp(k):
    def f(i):
        k.e("s_memrealtime s[%d:%d]" % (2 * i + 74 if False else 0, 0)) if False else None
        k.e("s_memrealtime s[92:93]\ns_waitcnt lgkmcnt(0)\nv_writelane_b32 v250, s92, %d" % i)
    return f
def ld_stamp_dump(k, off, done):
    k.e("s_cmp_eq_u32 s20, 4\ns_cbranch_scc0 %s" % done)
    k.e("v_writelane_b32 v250, s72, 8\nv_writelane_b32 v250, s78, 9\nv_writelane_b32 v250, s22, 10")
    k.e("s_load_dwordx2 s[94:95], s[0:1], 128\ns_waitcnt lgkmcnt(0)")
    k.e("s_lshl_b32 s33, s2, 6\ns_add_u32 s33, s33, %d\ns_add_u32 s94, s94, s33\ns_addc_u32 s95, s95, 0" % off)
    k.e("v_lshlrev_b32 v251, 2, v0\nv_cmp_gt_u32 vcc, 16, v0\ns_and_saveexec_b64 s[76:77], vcc")
    k.e("global_store_dword v251, v250, s[94:95]")
    k.e("s_mov_b64 exec, s[76:77]")

GW_OFF = 155648
LDS_TOTAL = GW_OFF + 2048
GATE_DOT2 = False
def gate_prep(k, stg, fxor_reg, srd_gw):
    k.e("s_and_b32 s32, s22, 3\ns_lshl_b32 s32, s32, 2\ns_add_u32 s32, s32, s30\ns_lshl_b32 s33, s32, 10")
    k.e("v_lshlrev_b32 v207, 4, v0\nv_add_u32 v207, s33, v207")
    k.e("v_add_u32 v212, %d, v207\nv_add_u32 v213, %d, v207" % (stg, 2 * stg))
    k.e("v_and_b32 v206, 7, v0\nv_xor_b32 v206, v206, v%d\nv_lshlrev_b32 v206, 4, v206\nv_add_u32 v206, %d, v206" % (fxor_reg, GW_OFF))
    k.e("v_mov_b32 v204, 0")
    k.e("s_lshr_b32 s33, s22, 2\ns_and_b32 s33, s33, 3")
    k.e("s_lshl_b32 s34, s21, 2\ns_add_u32 s34, s34, s33\ns_lshl_b32 s34, s34, 7\ns_lshl_b32 s32, s32, 3\ns_add_u32 s34, s34, s32\ns_lshl_b32 s34, s34, 2\ns_add_u32 s34, s34, %d" % WS_G)
    k.e("v_lshrrev_b32 v214, 3, v0\nv_lshlrev_b32 v214, 2, v214\nv_add_u32 v214, s34, v214")
    k.e("s_cmp_eq_u32 s30, 0\ns_cbranch_scc0 GATE_NODMA_%d" % gate_prep.n)
    k.e("v_lshlrev_b32 v205, 4, v0")
    k.e("s_mov_b32 m0, %d\ns_nop 0" % GW_OFF)
    k.e("buffer_load_dwordx4 v205, s[%d:%d], 0 offen lds" % (srd_gw, srd_gw + 3))
    k.e("s_mov_b32 m0, %d\ns_movk_i32 s32, 1024" % (GW_OFF + 1024))
    k.e("buffer_load_dwordx4 v205, s[%d:%d], s32 offen lds" % (srd_gw, srd_gw + 3))
    k.label("GATE_NODMA_%d" % gate_prep.n)
    gate_prep.n += 1
gate_prep.n = 0
def gate_step(k, s):
    a = [207, 212, 213][s % 3]
    k.e("ds_read_b128 v[200:203], v%d" % a)
    k.e("ds_read_b128 v[208:211], v206 offset:%d" % (128 * s))
    k.e("s_waitcnt lgkmcnt(0)")
    if GATE_DOT2:
        for i in range(4):
            k.e("v_dot2_f32_bf16 v204, v%d, v%d, v204" % (200 + i, 208 + i))
    else:
        for i in range(4):
            k.e("v_lshlrev_b32 v216, 16, v%d\nv_lshlrev_b32 v217, 16, v%d\nv_fmac_f32 v204, v216, v217" % (200 + i, 208 + i))
            k.e("v_and_b32 v216, 0xffff0000, v%d\nv_and_b32 v217, 0xffff0000, v%d\nv_fmac_f32 v204, v216, v217" % (200 + i, 208 + i))
def gate_finish(k, flags):
    k.e("s_nop 3")
    k.e("v_add_f32_dpp v204, v204, v204 quad_perm:[1,0,3,2] row_mask:0xf bank_mask:0xf")
    k.e("s_nop 1")
    k.e("v_add_f32_dpp v204, v204, v204 quad_perm:[2,3,0,1] row_mask:0xf bank_mask:0xf")
    k.e("s_nop 1")
    k.e("v_add_f32_dpp v204, v204, v204 row_half_mirror row_mask:0xf bank_mask:0xf")
    k.e("v_mul_f32 v204, 0xbfb8aa3b, v204")
    k.e("v_exp_f32 v204, v204")
    k.e("s_nop 0")
    k.e("v_add_f32 v204, 1.0, v204")
    k.e("v_rcp_f32 v204, v204")
    k.e("v_and_b32 v205, 7, v0")
    k.e("v_cmp_eq_u32 vcc, 0, v205")
    k.e("s_and_saveexec_b64 s[76:77], vcc")
    k.e("buffer_store_dword v204, v214, s[12:15], 0 offen %s" % flags)
    k.e("s_mov_b64 exec, s[76:77]")
```

```python
from common import *
import p1ffn, p1ssm

def k1_prologue(k, done="K1_DONE"):
    k.e("s_cmp_ge_u32 s2, 256\ns_cbranch_scc1 %s" % done)
    loads = [("x", 40), ("w1", 42), ("ws", 44), ("b1", 46), ("dbg", 70), ("bre", 60), ("bim", 62), ("lre", 64), ("lim", 66), ("logdt", 68), ("gw", 82)]
    for n, s in loads:
        k.e("s_load_dwordx2 s[%d:%d], s[0:1], %d" % (s, s + 1, KA[n]))
    k.e("s_memrealtime s[72:73]")
    k.e("s_and_b32 s25, s2, 7\ns_lshr_b32 s26, s2, 3\ns_bfe_u32 s27, s26, 0x10003\ns_lshl_b32 s21, s25, 1\ns_add_u32 s21, s21, s27")
    k.e("s_lshr_b32 s27, s26, 4\ns_lshl_b32 s27, s27, 3\ns_and_b32 s22, s26, 7\ns_add_u32 s22, s22, s27")
    k.e("v_lshrrev_b32 v1, 6, v0\ns_nop 0\nv_readfirstlane_b32 s20, v1\nv_and_b32 v0, 63, v0")
    k.e("s_waitcnt lgkmcnt(0)")
    k.e("s_memrealtime s[78:79]")
    k.e("v_mov_b32 v250, 0")

def gen_k1_test(stamps=True, store_flags="", touch=0, LA=8):
    k = K()
    lds = LDS_TOTAL
    k.e("; @launch kernel=k1_kernel grid=(256,1,1) block=(512,1,1) lds=%d" % lds)
    k.L.append('.amdgcn_target "amdgcn-amd-amdhsa--gfx950"')
    k.e(".text\n.globl k1_kernel\n.p2align 8\n.type k1_kernel,@function")
    k.label("k1_kernel")
    k1_prologue(k)
    srd(k, 4, 40, SZ['x']); srd(k, 12, 44, WS_SIZE); srd(k, 84, 82, SZ['gw'])
    k.e("s_cmp_lt_u32 s22, 8\ns_cbranch_scc1 K1_SSM")
    srd(k, 8, 42, SZ['w1']); srd(k, 16, 46, SZ['b1'])
    k.e("s_sub_u32 s23, s22, 8")
    k.e("s_mul_i32 s24, s23, 224")
    k.e("s_cmp_eq_u32 s23, 7\ns_cselect_b32 s24, 1504, s24")
    k.e("s_lshl_b32 s27, s24, 1\ns_and_b32 s26, s27, 0xffffff80\ns_sub_u32 s28, s27, s26")
    k.e("s_cmp_ge_u32 s20, 4\ns_cbranch_scc1 K1_FFN_LOADER")
    p1ffn.ffn_compute(k, stamps, store_flags, touch)
    k.e("s_branch K1_STAMP")
    k.label("K1_FFN_LOADER")
    p1ffn.ffn_loader(k, stamps=stamps, LA=LA, gflags=store_flags)
    k.e("s_branch K1_DONE")
    k.label("K1_SSM")
    srd(k, 8, 60, SZ['bre']); srd(k, 56, 62, SZ['bim']); srd(k, 16, 64, SZ['lre']); srd(k, 48, 66, SZ['lim']); srd(k, 52, 68, SZ['logdt'])
    k.e("s_cmp_ge_u32 s20, 4\ns_cbranch_scc1 K1_SSM_LOADER")
    p1ssm.ssm_compute(k, stamps, store_flags)
    k.e("s_branch K1_STAMP")
    k.label("K1_SSM_LOADER")
    def hook(s_):
        if s_ == 1:
            k.e("s_cmp_eq_u32 s2, 0\\ns_cbranch_scc0 K1_NO_NONCE\\ns_cmp_eq_u32 s20, 7\\ns_cbranch_scc0 K1_NO_NONCE".replace("\\n", "\n"))
            p1ssm.make_nonce(k, 200)
            k.label("K1_NO_NONCE")
    p1ssm.ssm_loader(k, LA=LA, stamps=stamps, hook_after=hook, gflags=store_flags)
    k.e("s_branch K1_DONE")
    k.label("K1_STAMP")
    if stamps:
        k.e("s_cmp_eq_u32 s20, 0\ns_cbranch_scc0 K1_DONE")
        k.e("s_waitcnt vmcnt(0)")
        k.e("s_memrealtime s[74:75]\ns_waitcnt lgkmcnt(0)")
        k.e("s_lshl_b32 s33, s2, 5\ns_add_u32 s33, s33, 4096\ns_add_u32 s70, s70, s33\ns_addc_u32 s71, s71, 0")
        k.e("s_sub_u32 s62, s62, s60\ns_sub_u32 s64, s64, s60\ns_sub_u32 s66, s66, s60\ns_sub_u32 s68, s68, s60")
        k.e("v_mov_b32 v4, s62\nv_mov_b32 v5, s64\nv_mov_b32 v6, s66\nv_mov_b32 v7, s68\nv_mov_b32 v8, s72\nv_mov_b32 v9, s74\nv_mov_b32 v10, s22\nv_mov_b32 v11, 1\nv_mov_b32 v12, 0")
        k.e("v_cmp_eq_u32 vcc, 0, v0\ns_and_saveexec_b64 s[76:77], vcc")
        k.e("global_store_dwordx4 v12, v[4:7], s[70:71]\nglobal_store_dwordx4 v12, v[8:11], s[70:71] offset:16")
    k.label("K1_DONE")
    k.e("s_endpgm")
    k.L.append('.section .rodata,"a"')
    k.L.append(kernel_desc("k1_kernel"))
    return k.text()

if __name__ == "__main__":
    import sys
    print(gen_k1_test(touch=int(sys.argv[1]) if len(sys.argv) > 1 else 0, LA=int(sys.argv[2]) if len(sys.argv) > 2 else 8))
```

```python
from common import *

STG = 49152
NST = 10

ACC, BIAS, F0X, F0W, F1X, F1W = 132, 104, 16, 32, 60, 76
AX0, AX1, AW = 4, 5, 6

def acc(m, n): return ACC + (m * 7 + n) * 4

def ffn_reads(k, kk, which):
    X = F0X if which == 0 else F1X
    W = F0W if which == 0 else F1W
    ax = AX0 if kk == 0 else AX1
    out = []
    for n in range(7):
        for h in range(2):
            out.append("ds_read_b64_tr_b16 %s, v%d offset:%d" % (vr(W + 4 * n + 2 * h, 2), AW + n, kk * 4096 + h * 512))
        if n < 4:
            out.append("ds_read_b128 %s, v%d offset:%d" % (vr(X + 4 * n), ax, n * 2048))
    return out

def ffn_mfmas(which, first=False):
    X = F0X if which == 0 else F1X
    W = F0W if which == 0 else F1W
    out = []
    for n in range(7):
        for m in range(4):
            c = vr(BIAS + 4 * n) if first else vr(acc(m, n))
            out.append("v_mfma_f32_16x16x32_bf16 %s, %s, %s, %s" % (vr(acc(m, n)), vr(W + 4 * n), vr(X + 4 * m), c))
    return out

def ffn_compute(k, stamps=False, store_flags="", touch=0):
    k.e("s_lshr_b32 s30, s20, 1")
    k.e("s_and_b32 s31, s20, 1")
    if touch:
        k.e("s_lshl_b32 s33, s21, 3\ns_add_u32 s33, s33, s23")
        k.e("s_lshl_b32 s34, s20, 6")
        k.e("v_add_u32 v250, s34, v0")
        k.e("v_lshlrev_b32 v251, 7, v250")
        k.e("v_mov_b32 v252, 0x7ffffff0")
        k.e("v_cmp_gt_u32 vcc, 160, v250\ns_nop 1\nv_cndmask_b32 v253, v252, v251, vcc")
        k.e("s_mul_i32 s34, s33, 20480")
        k.e("buffer_load_dword v254, v253, s[4:7], s34 offen")
        k.e("v_cmp_gt_u32 vcc, 135, v250\ns_nop 1\nv_cndmask_b32 v253, v252, v251, vcc")
        k.e("s_mul_i32 s34, s33, 17280")
        k.e("buffer_load_dword v255, v253, s[8:11], s34 offen")
    k.e("v_lshrrev_b32 v1, 4, v0")
    k.e("v_and_b32 v2, 15, v0")
    k.e("s_lshl_b32 s32, s30, 13")
    k.e("v_lshrrev_b32 v3, 1, v2")
    k.e("v_xor_b32 v3, v1, v3")
    k.e("v_lshlrev_b32 v3, 4, v3")
    k.e("v_lshl_add_u32 v3, v2, 7, v3")
    k.e("v_add_u32 v%d, s32, v3" % AX0)
    k.e("v_xor_b32 v%d, 64, v%d" % (AX1, AX0))
    k.e("v_bfe_u32 v13, v0, 2, 2")
    k.e("v_and_b32 v14, 3, v0")
    k.e("v_lshl_add_u32 v15, v1, 3, v13")
    k.e("v_lshlrev_b32 v15, 7, v15")
    k.e("v_lshl_add_u32 v15, v14, 3, v15")
    k.e("v_lshrrev_b32 v13, 1, v13")
    k.e("v_and_b32 v14, 1, v1")
    k.e("v_lshl_or_b32 v13, v14, 1, v13")
    for n in range(7):
        k.e("s_mul_i32 s33, s31, 224")
        k.e("s_add_u32 s33, s33, s28")
        k.e("s_add_u32 s33, s33, %d" % (32 * n))
        k.e("s_lshr_b32 s34, s33, 7")
        k.e("s_lshl_b32 s34, s34, 13")
        k.e("s_add_u32 s34, s34, 16384")
        k.e("s_bfe_u32 s35, s33, 0x20005")
        k.e("v_xor_b32 v14, s35, v13")
        k.e("v_lshl_add_u32 v14, v14, 5, v15")
        k.e("v_add_u32 v%d, s34, v14" % (AW + n))
    k.e("s_mul_i32 s33, s31, 112")
    k.e("s_add_u32 s33, s33, s24")
    k.e("s_lshl_b32 s33, s33, 1")
    k.e("v_lshlrev_b32 v14, 3, v1")
    for n in range(7):
        k.e("buffer_load_dwordx2 %s, v14, s[16:19], s33 offen offset:%d" % (vr(F1X + 2 * n, 2), 32 * n))
    k.e("s_lshl_b32 s32, s30, 12")
    k.e("v_lshlrev_b32 v13, 4, v0")
    k.e("v_add_u32 v13, s32, v13")
    k.e("s_waitcnt vmcnt(0)")
    for n in range(7):
        for h in range(2):
            src = F1X + 2 * n + h
            k.e("v_lshlrev_b32 v%d, 16, v%d" % (BIAS + 4 * n + 2 * h, src))
            k.e("v_and_b32 v%d, 0xffff0000, v%d" % (BIAS + 4 * n + 2 * h + 1, src))
    k.e("s_mov_b32 s36, %d" % STG)
    k.e("s_mov_b32 s39, %d" % STG)
    k.e("s_mov_b32 s29, %d" % (-2 * STG & 0xffffffff))
    k.e("s_mov_b32 s37, 0")
    if stamps:
        k.e("s_memtime s[60:61]")
    k.e("s_barrier")
    if stamps:
        k.e("s_memtime s[62:63]")
    k.e("\n".join(ffn_reads(k, 0, 0)))

    def midpoint():
        out = []
        for r in [AX0, AX1] + [AW + n for n in range(7)]:
            out.append("v_add_u32 v%d, s36, v%d" % (r, r))
        return out
    def delta_update():
        return ["s_add_u32 s37, s37, 1", "s_cmp_eq_u32 s37, 2", "s_cselect_b32 s36, s29, s39",
                "s_cmp_eq_u32 s37, 3", "s_cselect_b32 s37, 0, s37"]
    def iteration(first=False, last=False):
        k.e("s_waitcnt lgkmcnt(0)")
        fill = ffn_reads(k, 1, 1)
        if not last:
            fill = fill + midpoint()
        k.interleave(ffn_mfmas(0, first), fill)
        k.e("s_waitcnt lgkmcnt(0)")
        if not last:
            k.e("s_barrier")
            k.interleave(ffn_mfmas(1), ffn_reads(k, 0, 0) + delta_update())
        else:
            k.interleave(ffn_mfmas(1), [])
    iteration(first=True)
    k.e("s_mov_b32 s38, %d" % (NST - 2))
    k.label("FFN_LOOP")
    iteration()
    k.e("s_sub_u32 s38, s38, 1\ns_cmp_lg_u32 s38, 0\ns_cbranch_scc1 FFN_LOOP")
    iteration(last=True)
    if stamps:
        k.e("s_memtime s[64:65]")
    k.e("s_nop 7")
    k.e("s_mul_i32 s33, s21, 54")
    k.e("s_lshr_b32 s34, s24, 5")
    k.e("s_add_u32 s33, s33, s34")
    k.e("s_lshl_b32 s33, s33, 13")
    if WS_MIDF:
        k.e("s_add_u32 s33, s33, %d" % WS_MIDF)
    T = 16
    def relu2_pack(m, n, dst):
        a = acc(m, n)
        for r in range(4):
            k.e("v_max_f32 v%d, 0, v%d" % (a + r, a + r))
        k.e("v_pk_mul_f32 %s, %s, %s" % (vr(a, 2), vr(a, 2), vr(a, 2)))
        k.e("v_pk_mul_f32 %s, %s, %s" % (vr(a + 2, 2), vr(a + 2, 2), vr(a + 2, 2)))
        k.e("v_cvt_pk_bf16_f32 v%d, v%d, v%d" % (dst, a, a + 1))
        k.e("v_cvt_pk_bf16_f32 v%d, v%d, v%d" % (dst + 1, a + 2, a + 3))
    def epi(wf):
        tcount = [0]
        def tmp():
            t = T + (tcount[0] % 8) * 4
            tcount[0] += 1
            return t
        if wf == 0:
            pairs = [(0, 1, 0), (2, 3, 1), (4, 5, 2)]; single = (6, 3, 0)
        else:
            pairs = [(1, 2, 4), (3, 4, 5), (5, 6, 6)]; single = (0, 3, 8)
        for (n0, n1, ks) in pairs:
            k.e("s_add_u32 s34, s33, %d" % (ks * 8192))
            for m in range(4):
                t = tmp()
                relu2_pack(m, n0, t); relu2_pack(m, n1, t + 2)
                k.e("buffer_store_dwordx4 %s, v13, s[12:15], s34 offen offset:%d %s" % (vr(t), m * 1024, store_flags))
        n, ks, o = single
        k.e("s_add_u32 s34, s33, %d" % (ks * 8192))
        for m in range(4):
            t = tmp()
            relu2_pack(m, n, t)
            k.e("buffer_store_dwordx2 %s, v13, s[12:15], s34 offen offset:%d %s" % (vr(t, 2), m * 1024 + o, store_flags))
    k.e("s_cmp_eq_u32 s31, 0\ns_cbranch_scc0 FFN_EPI1")
    epi(0)
    k.e("s_branch FFN_EPI_END")
    k.label("FFN_EPI1")
    epi(1)
    k.label("FFN_EPI_END")
    if stamps:
        k.e("s_memtime s[66:67]")
        k.e("s_waitcnt vmcnt(0)")
        k.e("s_memtime s[68:69]")
        k.e("s_waitcnt lgkmcnt(0)")

def ffn_loader(k, stamps=True, LA=8, gate=True, gflags=""):
    k.e("s_sub_u32 s30, s20, 4")
    k.e("s_and_b32 s31, s30, 1")
    k.e("v_lshrrev_b32 v1, 3, v0")
    k.e("v_and_b32 v4, 7, v0")
    k.e("v_lshrrev_b32 v5, 4, v0")
    k.e("s_lshl_b32 s32, s31, 2")
    k.e("v_add_u32 v6, s32, v5")
    k.e("v_and_b32 v6, 7, v6")
    k.e("v_xor_b32 v6, v4, v6")
    k.e("v_lshlrev_b32 v6, 4, v6")
    k.e("v_mul_u32_u24 v7, 1280, v1")
    k.e("v_add_u32 v2, v6, v7")
    k.e("v_and_b32 v6, 1, v5")
    k.e("s_lshl_b32 s32, s31, 1")
    k.e("v_or_b32 v6, s32, v6")
    k.e("v_lshlrev_b32 v6, 1, v6")
    k.e("v_xor_b32 v6, v4, v6")
    k.e("v_lshlrev_b32 v6, 4, v6")
    k.e("v_mul_u32_u24 v7, 3456, v1")
    k.e("v_add_u32 v3, v6, v7")
    k.e("s_lshl_b32 s32, s21, 7")
    k.e("s_lshl_b32 s33, s30, 3")
    k.e("s_add_u32 s32, s32, s33")
    k.e("s_mul_i32 s40, s32, 1280")
    k.e("s_mul_i32 s41, s33, 3456")
    k.e("s_add_u32 s41, s41, s26")
    k.e("s_lshl_b32 s42, s30, 10")
    k.e("s_mov_b32 s43, 0")
    if gate:
        k.e("s_lshl_b32 s32, s31, 2\nv_add_u32 v215, s32, v5\nv_and_b32 v215, 7, v215")
        gate_prep(k, STG, 215, 84)
    def dma(idx):
        if idx < 4:
            u = idx
            k.e("s_add_u32 m0, s42, %d" % (u * 4096))
            k.e("s_add_u32 s44, s40, %d" % (u * 32 * 1280))
            k.e("buffer_load_dwordx4 v2, s[4:7], s44 offen lds")
        else:
            G, u = (idx - 4) // 2, (idx - 4) % 2
            k.e("s_add_u32 m0, s42, %d" % (16384 + G * 8192 + u * 4096))
            k.e("s_add_u32 s44, s41, %d" % (u * 32 * 3456 + G * 128))
            k.e("buffer_load_dwordx4 v3, s[8:11], s44 offen lds")
    def next_stage():
        k.e("s_add_u32 s40, s40, 128")
        k.e("s_add_u32 s41, s41, %d" % (64 * 3456))
        k.e("s_add_u32 s42, s42, %d" % STG)
        k.e("s_add_u32 s43, s43, 1")
        k.e("s_cmp_eq_u32 s43, 3")
        k.e("s_cselect_b32 s45, %d, 0" % (3 * STG))
        k.e("s_cselect_b32 s43, 0, s43")
        k.e("s_sub_u32 s42, s42, s45")
    def after(s):
        if gate:
            gate_step(k, s)
            if s == NST - 1: gate_finish(k, gflags)
    loader_seq(k, NST, 12, LA, dma, next_stage, after, stamp=ld_stamp(k) if stamps else None)
    if stamps: ld_stamp_dump(k, 32768, 'K1_DONE')

def gen_test(stamps=True, store_flags="", touch=0):
    k = K()
    k.e("; @launch kernel=k1_kernel grid=(256,1,1) block=(512,1,1) lds=%d" % (3 * STG))
    k.L.append('.amdgcn_target "amdgcn-amd-amdhsa--gfx950"')
    k.e(".text\n.globl k1_kernel\n.p2align 8\n.type k1_kernel,@function")
    k.label("k1_kernel")
    k.e("s_cmp_ge_u32 s2, 256\ns_cbranch_scc1 K1_DONE")
    k.e("s_load_dwordx2 s[40:41], s[0:1], %d" % KA['x'])
    k.e("s_load_dwordx2 s[42:43], s[0:1], %d" % KA['w1'])
    k.e("s_load_dwordx2 s[44:45], s[0:1], %d" % KA['ws'])
    k.e("s_load_dwordx2 s[46:47], s[0:1], %d" % KA['b1'])
    k.e("s_load_dwordx2 s[70:71], s[0:1], %d" % KA['dbg'])
    k.e("s_memrealtime s[72:73]")
    k.e("s_and_b32 s25, s2, 7\ns_lshr_b32 s26, s2, 3\ns_lshr_b32 s27, s26, 4\ns_lshl_b32 s21, s25, 1\ns_add_u32 s21, s21, s27\ns_and_b32 s22, s26, 15")
    k.e("v_lshrrev_b32 v1, 6, v0\ns_nop 0\nv_readfirstlane_b32 s20, v1\nv_and_b32 v0, 63, v0")
    k.e("s_waitcnt lgkmcnt(0)")
    k.e("s_memrealtime s[78:79]")
    srd(k, 4, 40, SZ['x']); srd(k, 8, 42, SZ['w1']); srd(k, 12, 44, WS_SIZE); srd(k, 16, 46, SZ['b1'])
    k.e("s_cmp_lt_u32 s22, 8\ns_cbranch_scc1 K1_DONE")
    k.e("s_sub_u32 s23, s22, 8")
    k.e("s_mul_i32 s24, s23, 224")
    k.e("s_cmp_eq_u32 s23, 7\ns_cselect_b32 s24, 1504, s24")
    k.e("s_lshl_b32 s27, s24, 1\ns_and_b32 s26, s27, 0xffffff80\ns_sub_u32 s28, s27, s26")
    k.e("s_cmp_ge_u32 s20, 4\ns_cbranch_scc1 K1_FFN_LOADER")
    ffn_compute(k, stamps, store_flags, touch)
    if stamps:
        k.e("s_cmp_eq_u32 s20, 0\ns_cbranch_scc0 K1_DONE")
        k.e("s_memrealtime s[74:75]\ns_waitcnt lgkmcnt(0)")
        k.e("s_lshl_b32 s33, s2, 5\ns_add_u32 s70, s70, s33\ns_addc_u32 s71, s71, 0")
        k.e("s_sub_u32 s62, s62, s60\ns_sub_u32 s64, s64, s60\ns_sub_u32 s66, s66, s60\ns_sub_u32 s68, s68, s60")
        k.e("v_mov_b32 v4, s62\nv_mov_b32 v5, s64\nv_mov_b32 v6, s66\nv_mov_b32 v7, s68\nv_mov_b32 v8, s72\nv_mov_b32 v9, s74\nv_mov_b32 v10, 0\nv_mov_b32 v11, 0\nv_mov_b32 v12, 0")
        k.e("v_cmp_eq_u32 vcc, 0, v0\ns_and_saveexec_b64 s[76:77], vcc")
        k.e("global_store_dwordx4 v12, v[4:7], s[70:71]\nglobal_store_dwordx4 v12, v[8:11], s[70:71] offset:16")
    k.e("s_branch K1_DONE")
    k.label("K1_FFN_LOADER")
    ffn_loader(k)
    k.label("K1_DONE")
    k.e("s_endpgm")
    k.L.append('.section .rodata,"a"')
    k.L.append(kernel_desc("k1_kernel"))
    return k.text()

if __name__ == "__main__":
    import sys
    print(gen_test(touch=int(sys.argv[1]) if len(sys.argv) > 1 else 0))
```

```python
from common import *

STG_S = 36864
NST = 10
S_ACC, S_F0X, S_F0W, S_F1X, S_F1W = 128, 16, 32, 52, 68
S_AX0, S_AX1, S_AW0, S_AW1 = 4, 5, 6, 7
S_K, S_SV, S_Z, S_Z2 = 88, 108, 113, 118
ET_OFF = 3 * STG_S
CT_OFF = ET_OFF + 5120
KT_OFF = CT_OFF + 5120
LDS_SSM = KT_OFF + 2560
DPP = "quad_perm:[1,0,3,2] row_mask:0xf bank_mask:0xf"
WS_EPOCH = (15 << 20) + (512 << 10)

def sacc(m, n): return S_ACC + (m * 5 + n) * 4
def kA(n): return S_K + 4 * n
def kBB(n): return S_K + 4 * n + 1
def kAL(n): return S_K + 4 * n + 2
def kBE(n): return S_K + 4 * n + 3

def lam_consts(k, vlre, vlim, vldt, va, vb, t0):
    k.e("v_lshlrev_b32 v%d, 16, v%d" % (vlre, vlre))
    k.e("v_lshlrev_b32 v%d, 16, v%d" % (vlim, vlim))
    k.e("v_lshlrev_b32 v%d, 16, v%d" % (vldt, vldt))
    k.e("v_mul_f32 v%d, 0x3fb8aa3b, v%d" % (vldt, vldt))
    k.e("v_exp_f32 v%d, v%d" % (vldt, vldt))
    k.e("s_nop 0")
    k.e("v_cvt_pk_bf16_f32 v%d, v%d, v%d" % (vldt, vldt, vldt))
    k.e("v_lshlrev_b32 v%d, 16, v%d" % (vldt, vldt))
    k.e("v_mul_f32 v%d, v%d, v%d" % (t0, vldt, vlre))
    k.e("v_mul_f32 v%d, v%d, v%d" % (t0 + 1, vldt, vlim))
    k.e("v_mul_f32 v%d, 0x3fb8aa3b, v%d" % (t0, t0))
    k.e("v_exp_f32 v%d, v%d" % (t0, t0))
    k.e("v_mul_f32 v%d, 0.15915494, v%d" % (t0 + 1, t0 + 1))
    k.e("v_fract_f32 v%d, v%d" % (t0 + 1, t0 + 1))
    k.e("s_nop 0")
    k.e("v_cos_f32 v%d, v%d" % (t0 + 2, t0 + 1))
    k.e("v_sin_f32 v%d, v%d" % (t0 + 3, t0 + 1))
    k.e("s_nop 0")
    k.e("v_mul_f32 v%d, v%d, v%d" % (va, t0, t0 + 2))
    k.e("v_mul_f32 v%d, v%d, v%d" % (vb, t0, t0 + 3))

def csq(k, va, vb, t):
    k.e("v_mul_f32 v%d, v%d, v%d" % (t, va, vb))
    k.e("v_mul_f32 v%d, v%d, v%d" % (va, va, va))
    k.e("v_fma_f32 v%d, -v%d, v%d, v%d" % (va, vb, vb, va))
    k.e("v_add_f32 v%d, v%d, v%d" % (vb, t, t))

def cmul(k, da, db, xa, xb, ya, yb):
    k.e("v_mul_f32 v%d, v%d, v%d" % (da, xa, ya))
    k.e("v_mul_f32 v%d, v%d, v%d" % (db, xa, yb))
    k.e("v_fma_f32 v%d, -v%d, v%d, v%d" % (da, xb, yb, da))
    k.e("v_fmac_f32 v%d, v%d, v%d" % (db, xb, ya))

def get_nonce(k, pfx, sdst=90):
    k.e("s_mov_b64 s[76:77], exec\ns_mov_b64 exec, 1")
    k.e("v_mov_b32 v14, 0")
    k.e("s_mov_b32 s36, 0")
    k.label(pfx + "_NPOLL")
    k.e("global_load_dword v16, v14, s[70:71] sc1")
    k.e("s_waitcnt vmcnt(0)")
    k.e("v_readfirstlane_b32 s%d, v16" % sdst)
    k.e("s_cmp_lg_u32 s%d, 0\ns_cbranch_scc1 %s_NDONE" % (sdst, pfx))
    k.e("s_add_u32 s36, s36, 1\ns_cmp_lt_u32 s36, 0x8000\ns_cbranch_scc0 %s_NDONE" % pfx)
    k.e("s_sleep 4\ns_branch %s_NPOLL" % pfx)
    k.label(pfx + "_NDONE")
    k.e("s_mov_b64 exec, s[76:77]")

def make_nonce(k, v=244):
    k.e("s_mov_b64 s[76:77], exec\ns_mov_b64 exec, 1")
    k.e("v_mov_b32 v%d, %d" % (v, WS_EPOCH))
    k.e("buffer_load_dword v%d, v%d, s[12:15], 0 offen sc1" % (v + 1, v))
    k.e("s_waitcnt vmcnt(0)")
    k.e("v_add_u32 v%d, 1, v%d\nv_or_b32 v%d, 1, v%d\nv_mov_b32 v%d, 0" % (v + 1, v + 1, v + 1, v + 1, v + 2))
    k.e("buffer_store_dword v%d, v%d, s[12:15], 0 offen sc1" % (v + 1, v))
    k.e("global_store_dword v%d, v%d, s[70:71] sc1" % (v + 2, v + 1))
    k.e("s_mov_b64 exec, s[76:77]")

def ssm_reads(kk, which):
    X = S_F0X if which == 0 else S_F1X
    W = S_F0W if which == 0 else S_F1W
    ax = S_AX0 if kk == 0 else S_AX1
    aw = S_AW0 if kk == 0 else S_AW1
    out = []
    for n in range(5):
        out.append("ds_read_b128 %s, v%d offset:%d" % (vr(W + 4 * n), aw, n * 1024))
        if n < 4:
            out.append("ds_read_b128 %s, v%d offset:%d" % (vr(X + 4 * n), ax, n * 512))
    return out

def ssm_mfmas(which, first=False):
    X = S_F0X if which == 0 else S_F1X
    W = S_F0W if which == 0 else S_F1W
    out = []
    for n in range(5):
        for m in range(4):
            c = "0" if first else vr(sacc(m, n))
            out.append("v_mfma_f32_16x16x32_bf16 %s, %s, %s, %s" % (vr(sacc(m, n)), vr(X + 4 * m), vr(W + 4 * n), c))
    return out

def ssm_compute(k, stamps=False, store_flags="", pre=None):
    k.e("s_lshr_b32 s30, s20, 1")
    k.e("s_and_b32 s31, s20, 1")
    if pre: pre()
    k.e("v_lshrrev_b32 v1, 4, v0")
    k.e("v_and_b32 v2, 15, v0")
    k.e("s_mul_i32 s33, s22, 80\ns_mul_i32 s34, s31, 40\ns_add_u32 s33, s33, s34")
    k.e("v_lshrrev_b32 v3, 1, v2")
    k.e("v_add_u32 v8, s33, v3")
    k.e("v_lshrrev_b32 v10, 2, v2")
    k.e("v_and_b32 v11, 3, v2")
    k.e("v_lshrrev_b32 v12, 1, v11")
    k.e("v_lshl_or_b32 v12, v10, 1, v12")
    k.e("v_xor_b32 v12, v1, v12")
    k.e("v_lshlrev_b32 v12, 4, v12")
    k.e("v_lshl_add_u32 v10, v10, 4, v11")
    k.e("v_lshl_add_u32 v12, v10, 7, v12")
    k.e("s_lshl_b32 s32, s30, 13")
    k.e("v_add_u32 v%d, s32, v12" % S_AX0)
    k.e("v_xor_b32 v%d, 64, v%d" % (S_AX1, S_AX0))
    k.e("v_and_b32 v10, 1, v2")
    k.e("v_and_b32 v11, 6, v3")
    k.e("v_or_b32 v11, v11, v10")
    k.e("v_xor_b32 v11, v1, v11")
    k.e("v_lshlrev_b32 v11, 4, v11")
    k.e("v_lshl_add_u32 v11, v3, 7, v11")
    k.e("v_mul_u32_u24 v12, 10240, v10")
    k.e("v_add_u32 v11, v11, v12")
    k.e("s_mul_i32 s32, s31, 5120\ns_add_u32 s32, s32, 16384")
    k.e("v_add_u32 v%d, s32, v11" % S_AW0)
    k.e("v_xor_b32 v%d, 64, v%d" % (S_AW1, S_AW0))
    k.e("s_mov_b32 s36, %d\ns_mov_b32 s39, %d\ns_mov_b32 s29, %d\ns_mov_b32 s37, 0" % (STG_S, STG_S, (-2 * STG_S) & 0xffffffff))
    k.e("s_lshl_b32 s32, s30, 2")
    k.e("v_add_u32 v12, s32, v1")
    for n in range(5):
        sv = S_SV + n
        k.e("v_add_u32 v13, %d, v8" % (8 * n))
        k.e("v_lshrrev_b32 v14, 6, v13")
        k.e("v_and_b32 v13, 63, v13")
        k.e("v_lshl_add_u32 v14, v14, 1, v10")
        k.e("v_lshl_add_u32 v14, v14, 6, v13")
        k.e("v_lshlrev_b32 v14, 8, v14")
        k.e("v_and_b32 v15, 3, v13")
        k.e("v_bfe_u32 v13, v13, 3, 1")
        k.e("v_lshl_or_b32 v15, v13, 2, v15")
        k.e("v_xor_b32 v15, v12, v15")
        k.e("v_lshl_add_u32 v%d, v15, 5, v14" % sv)
    k.e("v_mul_u32_u24 v13, 640, v12")
    k.e("v_lshl_add_u32 v13, v2, 2, v13")
    k.e("s_mul_i32 s32, s31, 320\ns_add_u32 s32, s32, %d" % ET_OFF)
    k.e("v_add_u32 v13, s32, v13")
    k.e("s_mul_i32 s32, s31, 1280\ns_add_u32 s32, s32, %d" % KT_OFF)
    k.e("v_lshlrev_b32 v14, 4, v2\nv_add_u32 v14, s32, v14")
    if stamps: k.e("s_memtime s[60:61]")
    k.e("s_barrier")
    if stamps: k.e("s_memtime s[62:63]")
    k.e("\n".join(ssm_reads(0, 0)))
    def midpoint():
        return ["v_add_u32 v%d, s36, v%d" % (r, r) for r in (S_AX0, S_AX1, S_AW0, S_AW1)]
    def delta_update():
        return ["s_add_u32 s37, s37, 1", "s_cmp_eq_u32 s37, 2", "s_cselect_b32 s36, s29, s39",
                "s_cmp_eq_u32 s37, 3", "s_cselect_b32 s37, 0, s37"]
    def iteration(first=False, last=False):
        k.e("s_waitcnt lgkmcnt(0)")
        fill = ssm_reads(1, 1)
        if not last:
            fill = fill + midpoint()
        k.interleave(ssm_mfmas(0, first), fill)
        k.e("s_waitcnt lgkmcnt(0)")
        if not last:
            k.e("s_barrier")
            k.interleave(ssm_mfmas(1), ssm_reads(0, 0) + delta_update())
        else:
            k.interleave(ssm_mfmas(1), ["ds_read_b128 %s, v14 offset:%d" % (vr(S_K + 4 * n), 256 * n) for n in range(5)])
    iteration(first=True)
    k.e("s_mov_b32 s38, %d" % (NST - 2))
    k.label("SSM_LOOP")
    iteration()
    k.e("s_sub_u32 s38, s38, 1\ns_cmp_lg_u32 s38, 0\ns_cbranch_scc1 SSM_LOOP")
    iteration(last=True)
    if stamps: k.e("s_memtime s[64:65]")
    k.e("s_waitcnt lgkmcnt(0)")
    k.e("s_nop 4")
    def reg(tau, n): return sacc(tau >> 2, n) + (tau & 3)
    for tau in range(1, 16):
        for n in range(5):
            k.e("v_fmac_f32 v%d, v%d, v%d" % (reg(tau, n), kA(n), reg(tau - 1, n)))
        for n in range(5):
            k.e("v_fmac_f32_dpp v%d, v%d, v%d %s" % (reg(tau, n), reg(tau - 1, n), kBB(n), DPP))
    for n in range(5):
        k.e("ds_write_b32 v13, v%d offset:%d" % (reg(15, n), 64 * n))
    k.e("s_waitcnt lgkmcnt(0)")
    k.e("s_barrier")
    if stamps: k.e("s_memtime s[66:67]")
    def preg(tau, n):
        i = tau * 5 + n
        return 16 + i if i < 72 else 208 + (i - 72)
    for tau in range(16):
        for n in range(5):
            k.e("v_mul_f32 v%d, v%d, v%d" % (preg(tau, n), kAL(n), reg(tau, n)))
        for n in range(5):
            k.e("v_fmac_f32_dpp v%d, v%d, v%d %s" % (preg(tau, n), reg(tau, n), kBE(n), DPP))
    NB = 220
    for n in range(5):
        k.e("v_sub_f32 v%d, 0, v%d" % (NB + n, kBB(n)))
    k.e("s_barrier")
    for n in range(5):
        k.e("ds_read_b32 v%d, v13 offset:%d" % (S_Z + n, 5120 + 64 * n))
    k.e("s_waitcnt lgkmcnt(0)")
    for n in range(5):
        k.e("v_mul_f32 v%d, v%d, v%d" % (S_Z2 + n, kA(n), S_Z + n))
    for n in range(5):
        k.e("v_fmac_f32_dpp v%d, v%d, v%d %s" % (S_Z2 + n, S_Z + n, kBB(n), DPP))
    for n in range(5):
        k.e("v_mul_f32 v%d, v%d, v%d" % (S_Z + n, kAL(n), S_Z2 + n))
    for n in range(5):
        k.e("v_fmac_f32_dpp v%d, v%d, v%d %s" % (S_Z + n, S_Z2 + n, kBE(n), DPP))
    cur, nxt = S_Z, S_Z2
    k.e("s_mul_i32 s33, s21, %d\ns_add_u32 s33, s33, %d" % (20 * 16384, WS_MIDS))
    TC = 228
    cnt = [0]
    def pack_store(ch):
        for n in range(5):
            t = TC + (cnt[0] % 6) * 4; cnt[0] += 1
            for mm in range(2):
                a = sacc(2 * ch + mm, n)
                k.e("v_cvt_pk_bf16_f32 v%d, v%d, v%d" % (t + 2 * mm, a, a + 1))
                k.e("v_cvt_pk_bf16_f32 v%d, v%d, v%d" % (t + 2 * mm + 1, a + 2, a + 3))
            k.e("buffer_store_dwordx4 %s, v%d, s[12:15], s33 offen offset:%d %s" % (vr(t), S_SV + n, 16 * ch, store_flags))
    for tau in range(16):
        for n in range(5):
            k.e("v_add_f32 v%d, v%d, v%d" % (reg(tau, n), preg(tau, n), cur + n))
        if tau < 15:
            for n in range(5):
                k.e("v_mul_f32 v%d, v%d, v%d" % (nxt + n, kA(n), cur + n))
            for n in range(5):
                k.e("v_fmac_f32_dpp v%d, v%d, v%d %s" % (nxt + n, cur + n, NB + n, DPP))
            cur, nxt = nxt, cur
        if tau == 8:
            pack_store(0)
    pack_store(1)
    if stamps:
        k.e("s_memtime s[68:69]\ns_waitcnt lgkmcnt(0)")

RA, RB, QA, QB = 100, 108, 120, 136

def ssm_loader(k, LA=8, stamps=False, hook_after=None, gate=True, gflags=""):
    k.e("s_sub_u32 s30, s20, 4")
    k.e("s_and_b32 s31, s30, 1")
    k.e("s_cmp_eq_u32 s31, 1")
    k.e("s_cselect_b32 s8, s56, s8\ns_cselect_b32 s9, s57, s9")
    k.e("v_lshrrev_b32 v1, 3, v0")
    k.e("v_and_b32 v4, 7, v0")
    k.e("v_lshrrev_b32 v5, 4, v0")
    k.e("s_lshr_b32 s32, s30, 1\ns_lshl_b32 s32, s32, 1")
    k.e("v_and_b32 v6, 1, v5")
    k.e("v_or_b32 v6, s32, v6")
    k.e("v_xor_b32 v6, v4, v6")
    k.e("v_lshlrev_b32 v6, 4, v6")
    k.e("v_mul_u32_u24 v7, 1280, v1")
    k.e("v_add_u32 v2, v6, v7")
    k.e("v_xor_b32 v8, 64, v2")
    k.e("v_and_b32 v6, 6, v1")
    k.e("v_or_b32 v6, s31, v6")
    k.e("v_xor_b32 v6, v4, v6")
    k.e("v_lshlrev_b32 v6, 4, v6")
    k.e("v_add_u32 v3, v6, v7")
    k.e("s_lshl_b32 s32, s21, 7\ns_lshl_b32 s33, s30, 3\ns_add_u32 s32, s32, s33\ns_mul_i32 s40, s32, 1280")
    k.e("s_mul_i32 s41, s22, 80\ns_lshr_b32 s33, s30, 1\ns_lshl_b32 s34, s33, 3\ns_add_u32 s41, s41, s34\ns_mul_i32 s41, s41, 1280")
    k.e("s_lshl_b32 s42, s30, 10")
    k.e("s_mul_i32 s46, s31, 10240\ns_lshl_b32 s34, s33, 10\ns_add_u32 s46, s46, s34\ns_add_u32 s46, s46, 16384")
    k.e("s_mov_b32 s47, 0\ns_mov_b32 s43, 0")
    if gate:
        k.e("s_and_b32 s32, s22, 3\ns_lshl_b32 s32, s32, 2\ns_add_u32 s32, s32, s30\ns_lshr_b32 s32, s32, 1\ns_and_b32 s32, s32, 3\ns_lshl_b32 s32, s32, 1")
        k.e("v_and_b32 v215, 1, v5\nv_or_b32 v215, s32, v215")
        gate_prep(k, STG_S, 215, 84)
    def dma(idx):
        if idx < 4:
            u = idx
            k.e("s_add_u32 s44, s42, s47")
            k.e("s_add_u32 m0, s44, %d" % (u * 4096))
            k.e("s_add_u32 s44, s40, %d" % (u * 32 * 1280))
            k.e("buffer_load_dwordx4 v%d, s[4:7], s44 offen lds" % (2 if u % 2 == 0 else 8))
        else:
            u = idx - 4
            k.e("s_add_u32 s44, s46, s47")
            k.e("s_add_u32 m0, s44, %d" % (u * 2048))
            k.e("s_add_u32 s44, s41, %d" % (u * 16 * 1280))
            k.e("buffer_load_dwordx4 v3, s[8:11], s44 offen lds")
    def next_stage():
        k.e("s_add_u32 s40, s40, 128\ns_add_u32 s41, s41, 128")
        k.e("s_add_u32 s47, s47, %d" % STG_S)
        k.e("s_add_u32 s43, s43, 1\ns_cmp_eq_u32 s43, 3")
        k.e("s_cselect_b32 s45, %d, 0\ns_cselect_b32 s43, 0, s43\ns_sub_u32 s47, s47, s45" % (3 * STG_S))
    def consts_load():
        k.e("s_lshl_b32 s32, s30, 6")
        k.e("v_add_u32 v10, s32, v0")
        k.e("v_lshrrev_b32 v11, 1, v10")
        k.e("s_mul_i32 s32, s22, 80")
        k.e("v_add_u32 v11, s32, v11")
        k.e("v_lshlrev_b32 v11, 1, v11")
        k.e("buffer_load_ushort v20, v11, s[16:19], 0 offen")
        k.e("buffer_load_ushort v21, v11, s[48:51], 0 offen")
        k.e("buffer_load_ushort v22, v11, s[52:55], 0 offen")
    def consts_compute():
        lam_consts(k, 20, 21, 22, 23, 24, 30)
        k.e("v_and_b32 v27, 1, v0\nv_cvt_f32_u32 v27, v27\nv_fma_f32 v27, v27, 2.0, -1.0")
        t0 = 30
        k.e("v_add_f32 v%d, -1.0, v23" % t0)
        k.e("v_mul_f32 v%d, v20, v20\nv_fmac_f32 v%d, v21, v21" % (t0 + 1, t0 + 1))
        k.e("v_rcp_f32 v%d, v%d" % (t0 + 1, t0 + 1))
        k.e("v_mul_f32 v%d, v%d, v20\nv_fmac_f32 v%d, v24, v21" % (t0 + 2, t0, t0 + 2))
        k.e("v_mul_f32 v%d, v24, v20" % (t0 + 3))
        k.e("v_fma_f32 v%d, -v%d, v21, v%d" % (t0 + 3, t0, t0 + 3))
        k.e("v_add_f32 v%d, v%d, v%d" % (t0 + 1, t0 + 1, t0 + 1))
        k.e("v_mul_f32 v%d, v%d, v%d" % (t0 + 2, t0 + 2, t0 + 1))
        k.e("v_mul_f32 v%d, v%d, v%d" % (t0 + 3, t0 + 3, t0 + 1))
        k.e("v_mov_b32 v36, v23\nv_mul_f32 v37, v27, v24")
        k.e("v_mul_f32 v38, v27, v%d\nv_sub_f32 v38, 0, v38\nv_sub_f32 v39, 0, v%d" % (t0 + 2, t0 + 3))
        k.e("v_lshlrev_b32 v12, 4, v10\nv_add_u32 v12, %d, v12" % KT_OFF)
        k.e("v_cmp_gt_u32 vcc, 160, v10\ns_and_saveexec_b64 s[74:75], vcc\ns_cbranch_execz SSM_KT_SKIP")
        k.e("ds_write_b128 v12, v[36:39]")
        k.label("SSM_KT_SKIP")
        k.e("s_mov_b64 exec, s[74:75]")
        for _ in range(4): csq(k, 23, 24, 30)
        k.e("v_mov_b32 v%d, v23\nv_mov_b32 v%d, v24" % (RA + 1, RB + 1))
        for kk in range(2, 8):
            cmul(k, RA + kk, RB + kk, RA + kk - 1, RB + kk - 1, RA + 1, RB + 1)
        cmul(k, QA + 1, QB + 1, RA + 7, RB + 7, RA + 1, RB + 1)
        for i in range(2, 15):
            cmul(k, QA + i, QB + i, QA + i - 1, QB + i - 1, QA + 1, QB + 1)
        for kk in range(1, 8):
            k.e("v_mul_f32 v%d, v27, v%d" % (RB + kk, RB + kk))
        for i in range(1, 15):
            k.e("v_mul_f32 v%d, v27, v%d" % (QB + i, QB + i))
        k.e("s_waitcnt lgkmcnt(0)")
    chunks = []
    def build_chunks():
        lines = k.capture(consts_compute)
        n = len(lines)
        i0 = [i for i, l in enumerate(lines) if l.startswith("SSM_KT_SKIP")][0] + 2
        first = lines[:i0]; rest = lines[i0:]
        chunks.append(first)
        per = (len(rest) + 5) // 6
        for i in range(0, len(rest), per):
            chunks.append(rest[i:i + per])
    build_chunks()
    def after(s):
        if s == 0:
            consts_load()
        if 2 <= s < 2 + len(chunks):
            k.L.extend(chunks[s - 2])
        if gate:
            gate_step(k, s)
            if s == NST - 1: gate_finish(k, gflags)
        if hook_after: hook_after(s)
    loader_seq(k, NST, 9, LA, dma, next_stage, after, stamp=ld_stamp(k) if stamps else None)
    if stamps:
        ld_stamp_dump(k, 32768, 'SSM_NODUMP')
        k.label('SSM_NODUMP')
    k.e("v_lshlrev_b32 v12, 2, v10\nv_add_u32 v12, %d, v12" % ET_OFF)
    k.e("v_lshlrev_b32 v13, 3, v10")
    k.e("s_mul_i32 s33, s22, %d\ns_add_u32 s33, s33, %d" % (16 * 1280, WS_E))
    k.e("s_mul_i32 s34, s21, 1280\ns_add_u32 s34, s34, s33")
    k.e("s_cmp_ge_u32 s30, 3\ns_cbranch_scc1 SSM_H_BX1")
    get_nonce(k, "SSM_H")
    k.e("v_mov_b32 v59, s90")
    k.e("s_setprio 3")
    k.label("SSM_H_BX1")
    k.e("s_barrier")
    if stamps: k.e("s_memrealtime s[80:81]")
    k.e("s_cmp_ge_u32 s30, 3\ns_cbranch_scc1 SSM_H_BX2")
    k.e("v_cmp_gt_u32 vcc, 160, v10\ns_and_saveexec_b64 s[74:75], vcc")
    for sg in range(8):
        k.e("ds_read_b32 v%d, v12 offset:%d" % (40 + sg, sg * 640))
    k.e("s_waitcnt lgkmcnt(0)")
    k.e("v_mov_b32 v58, v47")
    k.e("v_mul_f32 v56, v%d, v40\nv_mul_f32 v57, v%d, v41" % (RA + 7, RA + 6))
    k.e("v_fmac_f32_dpp v56, v40, v%d %s" % (RB + 7, DPP))
    k.e("v_fmac_f32_dpp v57, v41, v%d %s" % (RB + 6, DPP))
    accs = [58, 56, 57]
    for i, kk in enumerate(range(2, 7)):
        a = accs[i % 3]
        k.e("v_fmac_f32 v%d, v%d, v%d" % (a, RA + 7 - kk, 40 + kk))
        k.e("v_fmac_f32_dpp v%d, v%d, v%d %s" % (a, 40 + kk, RB + 7 - kk, DPP))
    k.e("v_add_f32 v58, v58, v56\nv_add_f32 v58, v58, v57")
    k.e("buffer_store_dwordx2 v[58:59], v13, s[12:15], s34 offen sc1")
    if stamps: k.e("s_memrealtime s[82:83]\ns_mov_b32 s36, 0\ns_mov_b32 s84, 0")
    k.e("v_mov_b32 v60, 0")
    k.e("s_mov_b32 s36, 0")
    def lb_loads():
        for i in range(15):
            k.e("s_cmp_le_u32 s21, %d\ns_cbranch_scc1 SSM_H_LOADED%d" % (i, lb_loads.n))
            k.e("s_sub_u32 s35, s34, %d" % ((i + 1) * 1280))
            k.e("buffer_load_dwordx2 v[%d:%d], v13, s[12:15], s35 offen sc1" % (64 + 2 * i, 65 + 2 * i))
        k.label("SSM_H_LOADED%d" % lb_loads.n)
        lb_loads.n += 1
    lb_loads.n = 0
    lb_loads()
    k.e("v_mov_b32 v50, 0\nv_mov_b32 v51, v40")
    for kk in range(1, 7):
        k.e("v_fma_f32 v%d, v%d, v%d, v%d" % (51 + kk, RA + 1, 50 + kk, 40 + kk))
        k.e("s_nop 0")
        k.e("v_fmac_f32_dpp v%d, v%d, v%d %s" % (51 + kk, 50 + kk, RB + 1, DPP))
        k.e("s_nop 0")
    k.e("s_cmp_eq_u32 s21, 0\ns_cbranch_scc1 SSM_H_HDONE")
    k.label("SSM_H_POLL")
    k.e("s_waitcnt vmcnt(0)")
    k.e("s_mov_b64 s[76:77], exec")
    for i in range(15):
        if i > 0:
            k.e("s_cmp_le_u32 s21, %d\ns_cbranch_scc1 SSM_H_CHECKED" % i)
        k.e("v_cmp_eq_u32 vcc, s90, v%d" % (65 + 2 * i))
        k.e("s_and_b64 s[76:77], s[76:77], vcc")
    k.label("SSM_H_CHECKED")
    k.e("s_cmp_eq_u64 s[76:77], exec\ns_cbranch_scc1 SSM_H_OK")
    k.e("s_add_u32 s36, s36, 1\ns_cmp_lt_u32 s36, 0x8000\ns_cbranch_scc0 SSM_H_OK")
    lb_loads()
    k.e("s_branch SSM_H_POLL")
    k.label("SSM_H_OK")
    if stamps: k.e("s_memrealtime s[84:85]")
    k.e("v_mov_b32 v60, v64\nv_mov_b32 v61, 0\nv_mov_b32 v62, 0")
    accs = [61, 62, 60]
    for i in range(1, 15):
        k.e("s_cmp_le_u32 s21, %d\ns_cbranch_scc1 SSM_H_HSUM" % i)
        a = accs[(i - 1) % 3]
        k.e("v_fmac_f32 v%d, v%d, v%d" % (a, QA + i, 64 + 2 * i))
        k.e("v_fmac_f32_dpp v%d, v%d, v%d %s" % (a, 64 + 2 * i, QB + i, DPP))
    k.label("SSM_H_HSUM")
    k.e("v_add_f32 v60, v60, v61\nv_add_f32 v60, v60, v62")
    k.label("SSM_H_HDONE")
    k.e("v_add_u32 v12, 5120, v12")
    k.e("s_nop 0")
    k.e("ds_write_b32 v12, v60")
    for kk in range(1, 8):
        k.e("v_fmac_f32 v%d, v%d, v60" % (50 + kk, RA + kk))
    for kk in range(1, 8):
        k.e("v_fmac_f32_dpp v%d, v60, v%d %s" % (50 + kk, RB + kk, DPP))
    for kk in range(1, 8):
        k.e("ds_write_b32 v12, v%d offset:%d" % (50 + kk, kk * 640))
    k.e("s_waitcnt lgkmcnt(0)")
    k.e("s_mov_b64 exec, s[74:75]")
    k.e("s_setprio 0")
    k.label("SSM_H_BX2")
    if stamps: k.e("s_memrealtime s[86:87]")
    k.e("s_barrier")
    if stamps:
        k.e("s_cmp_eq_u32 s30, 0\ns_cbranch_scc0 K1_DONE")
        k.e("s_waitcnt lgkmcnt(0)")
        k.e("s_lshl_b32 s33, s2, 5\ns_add_u32 s33, s33, 16384\ns_add_u32 s70, s70, s33\ns_addc_u32 s71, s71, 0")
        k.e("v_mov_b32 v4, s72\nv_mov_b32 v5, s80\nv_mov_b32 v6, s82\nv_mov_b32 v7, s84\nv_mov_b32 v8, s86\nv_mov_b32 v9, s36\nv_mov_b32 v10, s21\nv_mov_b32 v11, 1\nv_mov_b32 v12, 0")
        k.e("v_cmp_eq_u32 vcc, 0, v0\ns_and_saveexec_b64 s[76:77], vcc")
        k.e("global_store_dwordx4 v12, v[4:7], s[70:71]\nglobal_store_dwordx4 v12, v[8:11], s[70:71] offset:16")
```

```python
from common import *

STG2 = 40960
P_ACC, P_F0M, P_F0W, P_F1M, P_F1W = 128, 16, 32, 52, 68
A_M0, A_W = 4, 8
WS_XF = (15 << 20) + (640 << 10)
def pacc(m, n): return P_ACC + (m * 5 + n) * 4

def p2_reads(typ, kk, which):
    M = P_F0M if which == 0 else P_F1M
    W = P_F0W if which == 0 else P_F1W
    out = []
    if typ == "ffn":
        for n in range(5):
            for h in range(2):
                out.append("ds_read_b64_tr_b16 %s, v%d offset:%d" % (vr(W + 4 * n + 2 * h, 2), A_W + n, kk * 4096 + h * 2048))
            if n < 4:
                out.append("ds_read_b128 %s, v%d offset:%d" % (vr(M + 4 * n), A_M0, n * 1024 + kk * 8192))
    else:
        for n in range(5):
            out.append("ds_read_b128 %s, v%d offset:%d" % (vr(W + 4 * n), A_W + kk, n * 2048))
            if n < 4:
                for h in range(2):
                    out.append("ds_read_b64_tr_b16 %s, v%d offset:%d" % (vr(M + 4 * n + 2 * h, 2), A_M0 + n, kk * 8192 + h * 1024))
    return out

def p2_mfmas(which, first=False):
    M = P_F0M if which == 0 else P_F1M
    W = P_F0W if which == 0 else P_F1W
    out = []
    for n in range(5):
        for m in range(4):
            c = "0" if first else vr(pacc(m, n))
            out.append("v_mfma_f32_16x16x32_bf16 %s, %s, %s, %s" % (vr(pacc(m, n)), vr(W + 4 * n), vr(M + 4 * m), c))
    return out

def p2_compute(k, typ, pfx, stamps=False, xflags="sc1", nonce_s=90, pre_wait=None):
    k.e("s_lshr_b32 s30, s20, 1")
    k.e("s_and_b32 s31, s20, 1")
    k.e("v_lshrrev_b32 v1, 4, v0")
    k.e("v_and_b32 v2, 15, v0")
    k.e("v_bfe_u32 v13, v0, 2, 2")
    k.e("v_and_b32 v14, 3, v0")
    if typ == "ffn":
        k.e("s_lshl_b32 s32, s30, 12")
        k.e("v_lshlrev_b32 v%d, 4, v0" % A_M0)
        k.e("v_add_u32 v%d, s32, v%d" % (A_M0, A_M0))
        k.e("v_lshl_add_u32 v15, v1, 2, v13")
        k.e("v_lshrrev_b32 v3, 1, v15\nv_and_b32 v3, 3, v3")
        k.e("v_lshlrev_b32 v15, 7, v15")
        k.e("v_lshl_add_u32 v15, v14, 3, v15")
        k.e("s_and_b32 s35, s23, 1\ns_lshl_b32 s35, s35, 6")
        for n in range(5):
            k.e("s_mul_i32 s33, s31, 160\ns_add_u32 s33, s33, s35\ns_add_u32 s33, s33, %d" % (32 * n))
            k.e("s_lshr_b32 s34, s33, 7\ns_lshl_b32 s34, s34, 13\ns_add_u32 s34, s34, 16384")
            k.e("s_bfe_u32 s33, s33, 0x20005")
            k.e("v_xor_b32 v14, s33, v3")
            k.e("v_lshl_add_u32 v14, v14, 5, v15")
            k.e("v_add_u32 v%d, s34, v14" % (A_W + n))
        addr_regs = [A_M0] + [A_W + n for n in range(5)]
    else:
        k.e("v_lshl_add_u32 v15, v1, 3, v13")
        k.e("v_lshlrev_b32 v15, 8, v15")
        k.e("v_lshl_add_u32 v15, v14, 3, v15")
        k.e("v_and_b32 v3, 1, v1\nv_lshl_or_b32 v3, v3, 2, v13")
        k.e("s_lshl_b32 s32, s30, 2")
        for m in range(4):
            k.e("s_add_u32 s33, s32, %d" % m)
            k.e("v_xor_b32 v14, s33, v3")
            k.e("v_lshl_add_u32 v%d, v14, 5, v15" % (A_M0 + m))
        k.e("v_lshrrev_b32 v3, 1, v2\nv_xor_b32 v3, v1, v3\nv_lshlrev_b32 v3, 4, v3")
        k.e("v_lshl_add_u32 v3, v2, 7, v3")
        k.e("s_mul_i32 s32, s31, 10240\ns_add_u32 s32, s32, 16384")
        k.e("v_add_u32 v%d, s32, v3" % A_W)
        k.e("v_xor_b32 v%d, 64, v%d" % (A_W + 1, A_W))
        addr_regs = [A_M0 + m for m in range(4)] + [A_W, A_W + 1]
    k.e("s_mov_b32 s36, %d\ns_mov_b32 s39, %d\ns_mov_b32 s29, %d\ns_mov_b32 s37, 0" % (STG2, STG2, (-2 * STG2) & 0xffffffff))
    EX, ED, EB, EG = 208, 218, 228, 238
    k.e("s_lshl_b32 s32, s21, 7\ns_lshl_b32 s33, s30, 6\ns_add_u32 s32, s32, s33\ns_lshl_b32 s33, s24, 4\ns_add_u32 s32, s32, s33")
    k.e("v_add_u32 v14, s32, v2")
    k.e("s_mul_i32 s33, s23, 160\ns_mul_i32 s34, s31, 80\ns_add_u32 s33, s33, s34")
    k.e("v_lshl_add_u32 v15, v1, 2, s33")
    k.e("v_mul_u32_u24 v3, 640, v14")
    k.e("v_add_u32 v3, v3, v15")
    k.e("v_lshlrev_b32 v246, 2, v3")
    k.e("v_lshlrev_b32 v3, 1, v3")
    k.e("v_lshlrev_b32 v15, 1, v15")
    if pre_wait: pre_wait()
    for n in range(5):
        k.e("buffer_load_dwordx2 %s, v3, s[4:7], 0 offen offset:%d" % (vr(EX + 2 * n, 2), 32 * n))
        k.e("buffer_load_dwordx2 %s, v15, s[48:51], 0 offen offset:%d" % (vr(ED + 2 * n, 2), 32 * n))
        k.e("buffer_load_dwordx2 %s, v15, s[52:55], 0 offen offset:%d" % (vr(EB + 2 * n, 2), 32 * n))
    if stamps: k.e("s_memtime s[60:61]")
    k.e("s_barrier")
    if stamps: k.e("s_memtime s[62:63]")
    k.e("s_lshl_b32 s32, s21, 2\ns_add_u32 s32, s32, s24\ns_lshl_b32 s32, s32, 9\ns_add_u32 s32, s32, %d" % WS_G)
    k.e("s_lshl_b32 s33, s30, 8\ns_add_u32 s32, s32, s33")
    k.e("v_lshlrev_b32 v14, 2, v2")
    for m in range(4):
        k.e("buffer_load_dword v%d, v14, s[12:15], s32 offen offset:%d sc1" % (EG + m, 64 * m))
    k.e("\n".join(p2_reads(typ, 0, 0)))
    def midpoint():
        return ["v_add_u32 v%d, s36, v%d" % (r, r) for r in addr_regs]
    def delta_update():
        return ["s_add_u32 s37, s37, 1", "s_cmp_eq_u32 s37, 2", "s_cselect_b32 s36, s29, s39",
                "s_cmp_eq_u32 s37, 3", "s_cselect_b32 s37, 0, s37"]
    def iteration(first=False, last=False):
        k.e("s_waitcnt lgkmcnt(0)")
        fill = p2_reads(typ, 1, 1)
        if not last:
            fill = fill + midpoint()
        k.interleave(p2_mfmas(0, first), fill)
        k.e("s_waitcnt lgkmcnt(0)")
        if not last:
            k.e("s_barrier")
            k.interleave(p2_mfmas(1), p2_reads(typ, 0, 0) + delta_update())
        else:
            k.interleave(p2_mfmas(1), [])
    iteration(first=True)
    k.e("s_sub_u32 s38, s25, 2")
    k.label(pfx + "_LOOP")
    iteration()
    k.e("s_sub_u32 s38, s38, 1\ns_cmp_lg_u32 s38, 0\ns_cbranch_scc1 %s_LOOP" % pfx)
    iteration(last=True)
    if stamps: k.e("s_memtime s[64:65]")
    k.e("s_waitcnt vmcnt(0)")
    SC = 242
    for m in range(4):
        if typ == "ffn":
            k.e("v_sub_f32 v%d, 1.0, v%d" % (SC + m, EG + m))
        else:
            k.e("v_mov_b32 v%d, v%d" % (SC + m, EG + m))
    k.e("s_lshl_b32 s32, s21, 2\ns_add_u32 s32, s32, s23")
    k.e("s_mul_i32 s33, s32, %d" % (16 * 20 * 1024))
    k.e("s_add_u32 s33, s33, %d" % WS_XCH)
    k.e("s_mul_i32 s34, s20, 5120\ns_add_u32 s33, s33, s34")
    k.e("s_mul_i32 s34, s24, %d" % (20 * 1024))
    k.e("s_add_u32 s40, s33, s34")
    k.e("v_lshlrev_b32 v14, 4, v0")
    k.e("s_lshl_b32 s41, s32, 10\ns_lshl_b32 s34, s20, 6\ns_add_u32 s41, s41, s34\ns_add_u32 s41, s41, %d" % WS_XF)
    def epi(q):
        for m in range(4):
            if m == q: continue
            k.e("s_add_u32 s34, s40, %d" % (m * 4 * 20 * 1024))
            k.e("s_add_u32 s35, s34, 4096")
            for n in range(5):
                a = pacc(m, n)
                for r in range(4):
                    k.e("v_mul_f32 v%d, v%d, v%d" % (a + r, a + r, SC + m))
                if n < 4:
                    k.e("buffer_store_dwordx4 %s, v14, s[12:15], s34 offen offset:%d %s" % (vr(a), n * 1024, xflags))
                else:
                    k.e("buffer_store_dwordx4 %s, v14, s[12:15], s35 offen %s" % (vr(a), xflags))
        gq = EG + q
        k.e("v_sub_f32 v14, 1.0, v%d" % gq)
        for n in range(5):
            a = pacc(q, n)
            for r in range(4):
                k.e("v_mul_f32 v%d, v%d, v%d" % (a + r, a + r, SC + q))
            for h in range(2):
                xs, ds, bs = EX + 2 * n + h, ED + 2 * n + h, EB + 2 * n + h
                k.e("v_lshlrev_b32 v16, 16, v%d\nv_and_b32 v17, 0xffff0000, v%d" % (xs, xs))
                k.e("v_lshlrev_b32 v18, 16, v%d\nv_and_b32 v19, 0xffff0000, v%d" % (ds, ds))
                k.e("v_lshlrev_b32 v20, 16, v%d\nv_and_b32 v21, 0xffff0000, v%d" % (bs, bs))
                k.e("v_mul_f32 v16, v16, v18\nv_mul_f32 v17, v17, v19")
                k.e("v_fmac_f32 v%d, v%d, v16\nv_fmac_f32 v%d, v%d, v17" % (a + 2 * h, gq, a + 2 * h + 1, gq))
                k.e("v_fmac_f32 v%d, v14, v20\nv_fmac_f32 v%d, v14, v21" % (a + 2 * h, a + 2 * h + 1))
        k.e("s_waitcnt vmcnt(0)")
        k.e("s_mov_b64 s[76:77], exec\ns_mov_b64 exec, 1")
        k.e("v_mov_b32 v16, s%d\nv_mov_b32 v17, %d" % (nonce_s, q * 4))
        for m in range(4):
            if m == q: continue
            k.e("s_add_u32 s34, s41, %d" % (m * 256))
            k.e("buffer_store_dword v16, v17, s[12:15], s34 offen sc1")
        k.e("s_add_u32 s34, s41, %d" % (q * 256))
        k.e("v_mov_b32 v17, 0\ns_mov_b32 s36, 0")
        k.label("%s_XP%d" % (pfx, q))
        k.e("buffer_load_dwordx4 v[20:23], v17, s[12:15], s34 offen sc1")
        k.e("s_waitcnt vmcnt(0)")
        k.e("s_mov_b32 s35, 1")
        for m in range(4):
            if m == q: continue
            k.e("v_readfirstlane_b32 s37, v%d" % (20 + m))
            k.e("s_cmp_eq_u32 s37, s%d\ns_cselect_b32 s35, s35, 0" % nonce_s)
        k.e("s_cmp_eq_u32 s35, 1\ns_cbranch_scc1 %s_XD%d" % (pfx, q))
        k.e("s_add_u32 s36, s36, 1\ns_cmp_lt_u32 s36, 0x8000\ns_cbranch_scc0 %s_XD%d" % (pfx, q))
        k.e("s_sleep 1\ns_branch %s_XP%d" % (pfx, q))
        k.label("%s_XD%d" % (pfx, q))
        k.e("s_mov_b64 exec, s[76:77]")
        if stamps: k.e("s_memtime s[66:67]")
        k.e("v_lshlrev_b32 v14, 4, v0")
        R = 16
        idx = 0
        for src in range(4):
            if src == q: continue
            k.e("s_add_u32 s34, s33, %d" % ((q * 4 + src) * 20 * 1024))
            for n in range(5):
                dstr = R + (idx * 5 + n) * 4
                if n < 4:
                    k.e("buffer_load_dwordx4 %s, v14, s[12:15], s34 offen offset:%d sc1" % (vr(dstr), n * 1024))
                else:
                    k.e("s_add_u32 s35, s34, 4096")
                    k.e("buffer_load_dwordx4 %s, v14, s[12:15], s35 offen sc1" % vr(dstr))
            idx += 1
        k.e("s_waitcnt vmcnt(0)")
        for n in range(5):
            a = pacc(q, n)
            for i in range(3):
                s_ = R + (i * 5 + n) * 4
                k.e("v_pk_add_f32 %s, %s, %s" % (vr(a, 2), vr(a, 2), vr(s_, 2)))
                k.e("v_pk_add_f32 %s, %s, %s" % (vr(a + 2, 2), vr(a + 2, 2), vr(s_ + 2, 2)))
            k.e("buffer_store_dwordx4 %s, v246, s[16:19], 0 offen offset:%d" % (vr(a), 64 * n))
    q0 = 2 if typ == "ffn" else 0
    k.e("s_nop 7")
    k.e("s_cmp_eq_u32 s24, %d\ns_cbranch_scc0 %s_EPI1" % (q0, pfx))
    epi(q0)
    k.e("s_branch %s_EPI_END" % pfx)
    k.label(pfx + "_EPI1")
    epi(q0 + 1)
    k.label(pfx + "_EPI_END")
    if stamps:
        k.e("s_waitcnt vmcnt(0)")
        k.e("s_memtime s[68:69]\ns_waitcnt lgkmcnt(0)")

def rolled_loader(k, pfx, N, LA, dma, next_stage, nst_s):
    LA = min(LA, N)
    for i in range(N): dma(i)
    next_stage()
    for i in range(LA): dma(i)
    k.e("s_waitcnt vmcnt(%d)" % LA)
    k.e("s_barrier")
    k.e("s_sub_u32 s49, s%d, 2" % nst_s)
    k.label(pfx + "_LL")
    for i in range(LA, N): dma(i)
    next_stage()
    for i in range(LA): dma(i)
    k.e("s_waitcnt vmcnt(%d)" % LA)
    k.e("s_barrier")
    k.e("s_sub_u32 s49, s49, 1\ns_cmp_lg_u32 s49, 0\ns_cbranch_scc1 %s_LL" % pfx)
    for i in range(LA, N): dma(i)
    k.e("s_waitcnt vmcnt(0)")
    k.e("s_barrier")

def p2_loader(k, typ, pfx, LA=8, mflags="sc1", pre_wait=None):
    k.e("s_sub_u32 s30, s20, 4")
    k.e("v_lshrrev_b32 v1, 3, v0\nv_and_b32 v4, 7, v0\nv_lshrrev_b32 v5, 4, v0")
    k.e("v_lshlrev_b32 v2, 4, v0")
    k.e("v_mul_u32_u24 v7, 1280, v1")
    k.e("s_lshl_b32 s42, s30, 10")
    k.e("s_mov_b32 s43, 0")
    if typ == "ffn":
        k.e("v_and_b32 v6, 3, v5\nv_lshlrev_b32 v6, 1, v6\nv_xor_b32 v6, v4, v6\nv_lshlrev_b32 v6, 4, v6")
        k.e("v_add_u32 v3, v6, v7")
        k.e("s_cmp_eq_u32 s24, 2\ns_cselect_b32 s32, 0, 14")
        k.e("s_mul_i32 s40, s21, 27\ns_add_u32 s40, s40, s32\ns_lshl_b32 s40, s40, 14\ns_lshl_b32 s33, s30, 10\ns_add_u32 s40, s40, s33")
        if WS_MIDF: k.e("s_add_u32 s40, s40, %d" % WS_MIDF)
        k.e("s_lshl_b32 s41, s32, 6\ns_lshl_b32 s33, s30, 3\ns_add_u32 s41, s41, s33\ns_mul_i32 s41, s41, 1280")
        k.e("s_mul_i32 s33, s23, 320\ns_and_b32 s33, s33, 0xffffff80\ns_add_u32 s41, s41, s33")
        N = 10
        def dma(idx):
            if idx < 6:
                G, u = idx // 2, idx % 2
                k.e("s_add_u32 m0, s42, %d" % (16384 + G * 8192 + u * 4096))
                k.e("s_add_u32 s44, s41, %d" % (u * 32 * 1280 + G * 128))
                k.e("buffer_load_dwordx4 v3, s[8:11], s44 offen lds")
            else:
                u = idx - 6
                k.e("s_add_u32 m0, s42, %d" % (u * 4096))
                k.e("s_add_u32 s44, s40, %d" % (u * 4096))
                k.e("buffer_load_dwordx4 v2, s[12:15], s44 offen %s lds" % mflags)
        def next_stage():
            k.e("s_add_u32 s40, s40, 16384\ns_add_u32 s41, s41, %d" % (64 * 1280))
            k.e("s_add_u32 s42, s42, %d\ns_add_u32 s43, s43, 1\ns_cmp_eq_u32 s43, 3" % STG2)
            k.e("s_cselect_b32 s45, %d, 0\ns_cselect_b32 s43, 0, s43\ns_sub_u32 s42, s42, s45" % (3 * STG2))
    else:
        k.e("s_and_b32 s31, s30, 1\ns_lshl_b32 s32, s31, 2")
        k.e("v_add_u32 v6, s32, v5\nv_and_b32 v6, 7, v6\nv_xor_b32 v6, v4, v6\nv_lshlrev_b32 v6, 4, v6")
        k.e("v_add_u32 v3, v6, v7")
        k.e("s_mul_i32 s40, s21, 20\ns_mul_i32 s33, s24, 10\ns_add_u32 s40, s40, s33\ns_lshl_b32 s40, s40, 14\ns_lshl_b32 s33, s30, 10\ns_add_u32 s40, s40, s33\ns_add_u32 s40, s40, %d" % WS_MIDS)
        k.e("s_mul_i32 s41, s23, 160\ns_lshl_b32 s33, s30, 3\ns_add_u32 s41, s41, s33\ns_mul_i32 s41, s41, 1280")
        k.e("s_mul_i32 s33, s24, 640\ns_add_u32 s41, s41, s33")
        k.e("s_mov_b32 s60, s8\ns_mov_b32 s61, s9\ns_mov_b32 s46, 0")
        N = 9
        def dma(idx):
            if idx < 5:
                u = idx
                k.e("s_add_u32 m0, s42, %d" % (16384 + u * 4096))
                k.e("s_add_u32 s44, s41, %d" % (u * 32 * 1280))
                k.e("buffer_load_dwordx4 v3, s[8:11], s44 offen lds")
            else:
                u = idx - 5
                k.e("s_add_u32 m0, s42, %d" % (u * 4096))
                k.e("s_add_u32 s44, s40, %d" % (u * 4096))
                k.e("buffer_load_dwordx4 v2, s[12:15], s44 offen %s lds" % mflags)
        def next_stage():
            k.e("s_add_u32 s40, s40, 16384")
            k.e("s_xor_b32 s46, s46, 1\ns_cmp_eq_u32 s46, 1")
            k.e("s_cselect_b32 s8, s56, s60\ns_cselect_b32 s9, s57, s61")
            k.e("s_cselect_b32 s45, 0, 128\ns_add_u32 s41, s41, s45")
            k.e("s_add_u32 s42, s42, %d\ns_add_u32 s43, s43, 1\ns_cmp_eq_u32 s43, 3" % STG2)
            k.e("s_cselect_b32 s45, %d, 0\ns_cselect_b32 s43, 0, s43\ns_sub_u32 s42, s42, s45" % (3 * STG2))
    if pre_wait: pre_wait()
    rolled_loader(k, pfx, N, LA, dma, next_stage, 25)
```

```python
from common import *
import p1ffn, p1ssm, p2, k1
NAME = "gated_mix__ssm_conv_s5__dense_activation_squared_relu__prompt"

def decode_wg(k):
    k.e("s_and_b32 s25, s2, 7\ns_lshr_b32 s26, s2, 3\ns_bfe_u32 s27, s26, 0x10003\ns_lshl_b32 s21, s25, 1\ns_add_u32 s21, s21, s27")
    k.e("s_lshr_b32 s27, s26, 4\ns_lshl_b32 s27, s27, 3\ns_and_b32 s22, s26, 7\ns_add_u32 s22, s22, s27")

def gen_k2(k, stamps=False, LA=8):
    k.e(".globl k2_kernel\n.p2align 8\n.type k2_kernel,@function")
    k.label("k2_kernel")
    k.e("s_cmp_ge_u32 s2, 256\ns_cbranch_scc1 K2_DONE")
    loads = [("x", 40), ("ws", 44), ("out", 46), ("dskip", 62), ("b2", 64), ("w2", 66), ("cre", 68), ("cim", 80), ("dbg", 70)]
    for n, s in loads:
        k.e("s_load_dwordx2 s[%d:%d], s[0:1], %d" % (s, s + 1, KA[n]))
    k.e("s_memrealtime s[72:73]")
    decode_wg(k)
    k.e("v_lshrrev_b32 v1, 6, v0\ns_nop 0\nv_readfirstlane_b32 s20, v1\nv_and_b32 v0, 63, v0")
    k.e("s_and_b32 s23, s22, 3\ns_lshr_b32 s24, s22, 2")
    k.e("s_waitcnt lgkmcnt(0)")
    k.e("s_add_u32 s82, s44, %d\ns_addc_u32 s83, s45, 0" % p1ssm.WS_EPOCH)
    k.e("s_load_dword s90, s[82:83], 0")
    srd(k, 4, 40, SZ['x']); srd(k, 12, 44, WS_SIZE); srd(k, 16, 46, SZ['out']); srd(k, 48, 62, SZ['dskip']); srd(k, 52, 64, SZ['b2'])
    k.e("s_waitcnt lgkmcnt(0)")
    k.e("s_cmp_lt_u32 s24, 2\ns_cbranch_scc1 K2_SSM")
    srd(k, 8, 66, SZ['w2'])
    k.e("s_cmp_eq_u32 s24, 2\ns_cselect_b32 s25, 14, 13")
    k.e("s_cmp_ge_u32 s20, 4\ns_cbranch_scc1 K2_FL")
    p2.p2_compute(k, "ffn", "K2F", stamps)
    k.e("s_branch K2_STAMP")
    k.label("K2_FL")
    p2.p2_loader(k, "ffn", "K2F", LA)
    k.e("s_branch K2_DONE")
    k.label("K2_SSM")
    srd(k, 8, 68, SZ['cre']); srd(k, 56, 80, SZ['cim'])
    k.e("s_mov_b32 s25, 10")
    k.e("s_cmp_ge_u32 s20, 4\ns_cbranch_scc1 K2_SL")
    p2.p2_compute(k, "ssm", "K2S", stamps)
    k.e("s_branch K2_STAMP")
    k.label("K2_SL")
    p2.p2_loader(k, "ssm", "K2S", LA)
    k.e("s_branch K2_DONE")
    k.label("K2_STAMP")
    if stamps:
        k.e("s_cmp_eq_u32 s20, 0\ns_cbranch_scc0 K2_DONE")
        k.e("s_memrealtime s[74:75]\ns_waitcnt lgkmcnt(0)")
        k.e("s_lshl_b32 s33, s2, 5\ns_add_u32 s33, s33, 65536\ns_add_u32 s70, s70, s33\ns_addc_u32 s71, s71, 0")
        k.e("s_sub_u32 s62, s62, s60\ns_sub_u32 s64, s64, s60\ns_sub_u32 s66, s66, s60\ns_sub_u32 s68, s68, s60")
        k.e("v_mov_b32 v4, s62\nv_mov_b32 v5, s64\nv_mov_b32 v6, s66\nv_mov_b32 v7, s68\nv_mov_b32 v8, s72\nv_mov_b32 v9, s74\nv_mov_b32 v10, s22\nv_mov_b32 v11, 1\nv_mov_b32 v12, 0")
        k.e("v_cmp_eq_u32 vcc, 0, v0\ns_and_saveexec_b64 s[76:77], vcc")
        k.e("global_store_dwordx4 v12, v[4:7], s[70:71]\nglobal_store_dwordx4 v12, v[8:11], s[70:71] offset:16")
    k.label("K2_DONE")
    k.e("s_endpgm")

HEADER = open("cdna_kernels/%s.s.ref" % NAME).read().split("; Override launch geometry")[0]

def gen(stamps=False, LA=8, store_flags="sc1"):
    t1 = k1.gen_k1_test(stamps=stamps, store_flags=store_flags, touch=0, LA=LA)
    body1 = t1[t1.index(".globl k1_kernel"):t1.index('.section .rodata')]
    k = K()
    gen_k2(k, stamps, LA)
    out = HEADER
    out += "; @launch kernel=k1_kernel grid=(256,1,1) block=(512,1,1) lds=%d\n" % LDS_TOTAL
    out += "; @launch kernel=k2_kernel grid=(256,1,1) block=(512,1,1) lds=%d\n" % (3 * p2.STG2)
    out += '.amdgcn_target "amdgcn-amd-amdhsa--gfx950"\n.text\n'
    out += body1 + k.text()
    out += '.section .rodata,"a"\n' + kernel_desc("k1_kernel") + kernel_desc("k2_kernel")
    return out

if __name__ == "__main__":
    import sys
    print(gen(stamps=bool(int(sys.argv[1])) if len(sys.argv) > 1 else False))
```

```python
import sys
from common import K, vr, sr, KA, SZ, srd, kernel_desc
NAME = "gated_mix__ssm_conv_s5__dense_activation_squared_relu__prompt"
KNAME = NAME + "_kernel"

WS_MIDF = 0
WS_MIDS = 8 << 20
WS_G    = 14 << 20
WS_E    = 15 << 20
WS_EPOCH = (15 << 20) + (512 << 10)
WS_XT   = (15 << 20) + (576 << 10)
WS_PF   = (15 << 20) + (608 << 10)
WS_XF   = (15 << 20) + (640 << 10)
WS_XCH  = 16 << 20
WS_SIZE = 64 << 20
STG_F = 49152; STG_S = 36864; STG2 = 40960
ET_OFF = 122880; CT_OFF = ET_OFF + 5120; KT_OFF = CT_OFF + 5120
GW_OFF = 155648
SYNC_OFF = GW_OFF + 2048
LDS_TOTAL = SYNC_OFF + 64
DPP = "quad_perm:[1,0,3,2] row_mask:0xf bank_mask:0xf"
NST = 10

class Gen:
    def __init__(self, stamps=False, LA=8, touch=True, prio=True, force_slow=False):
        self.k = K(); self.stamps = stamps; self.LA = LA; self.touch = touch; self.prio = prio; self.force_slow = force_slow
        self.uid = 0
    def e(self, s): self.k.e(s)
    def label(self, s): self.k.label(s)
    def u(self, base):
        self.uid += 1
        return "%s_%d" % (base, self.uid)
    def stamp(self, i):
        if self.stamps:
            self.e("s_memrealtime s[92:93]\ns_waitcnt lgkmcnt(0)\nv_writelane_b32 v255, s92, %d" % i)
    def stamp_dump(self):
        if not self.stamps: return
        self.e("s_load_dwordx2 s[94:95], s[0:1], %d\ns_waitcnt lgkmcnt(0)" % KA['dbg'])
        self.e("s_lshl_b32 s33, s2, 3\ns_add_u32 s33, s33, s20\ns_lshl_b32 s33, s33, 7\ns_add_u32 s33, s33, 4096\ns_add_u32 s94, s94, s33\ns_addc_u32 s95, s95, 0")
        self.e("v_writelane_b32 v255, s22, 30\nv_writelane_b32 v255, s21, 31")
        self.e("v_lshlrev_b32 v254, 2, v0\nv_cmp_gt_u32 vcc, 32, v0\ns_and_saveexec_b64 s[76:77], vcc")
        self.e("global_store_dword v254, v255, s[94:95]")
        self.e("s_mov_b64 exec, s[76:77]")

    def gemm_loop(self, pfx, reads, mfmas, addr_regs, stg, nst_expr, last_fill=None, first_c=True):
        k = self.k
        self.e("s_mov_b32 s36, %d\ns_mov_b32 s39, %d\ns_mov_b32 s29, %d\ns_mov_b32 s37, 0" % (stg, stg, (-2 * stg) & 0xffffffff))
        self.e("\n".join(reads(0, 0)))
        mid = ["v_add_u32 v%d, s36, v%d" % (r, r) for r in addr_regs]
        dupd = ["s_add_u32 s37, s37, 1", "s_cmp_eq_u32 s37, 2", "s_cselect_b32 s36, s29, s39", "s_cmp_eq_u32 s37, 3", "s_cselect_b32 s37, 0, s37"]
        def iteration(first=False, last=False):
            self.e("s_waitcnt lgkmcnt(0)")
            k.interleave(mfmas(0, first), reads(1, 1) + ([] if last else mid))
            self.e("s_waitcnt lgkmcnt(0)")
            if not last:
                self.e("s_barrier")
                k.interleave(mfmas(1, False), reads(0, 0) + dupd)
            else:
                k.interleave(mfmas(1, False), last_fill or [])
        iteration(first=True)
        if isinstance(nst_expr, int):
            self.e("s_mov_b32 s38, %d" % (nst_expr - 2))
        else:
            self.e("s_sub_u32 s38, %s, 2" % nst_expr)
        self.label(pfx + "_LOOP")
        iteration()
        self.e("s_sub_u32 s38, s38, 1\ns_cmp_lg_u32 s38, 0\ns_cbranch_scc1 %s_LOOP" % pfx)
        iteration(last=True)

    def loader_seq(self, nst, N, dma, next_stage, after=None, stamp_base=None):
        LA = min(self.LA, N)
        self.ndma_iter = N
        for s in range(nst):
            for i in range(0 if s == 0 else LA, N): dma(i)
            next_stage()
            if s + 1 < nst:
                for i in range(LA): dma(i)
            if s >= 1 and after: after(s - 1)
            self.e("s_waitcnt vmcnt(%d)" % (LA if s + 1 < nst else 0))
            self.e("s_barrier")
            if stamp_base is not None and s in (0, 3, 9): self.stamp(stamp_base + (0, 0, 0, 1, 0, 0, 0, 0, 0, 2)[s])
        if after: after(nst - 1)

    def lds_next(self, sbase, sidx, stg):
        self.e("s_add_u32 s%d, s%d, %d\ns_add_u32 s%d, s%d, 1\ns_cmp_eq_u32 s%d, 3" % (sbase, sbase, stg, sidx, sidx, sidx))
        self.e("s_cselect_b32 s45, %d, 0\ns_cselect_b32 s%d, 0, s%d\ns_sub_u32 s%d, s%d, s45" % (3 * stg, sidx, sidx, sbase, sbase))

    def service_init(self):
        self.e("s_getreg_b32 s88, hwreg(HW_REG_XCC_ID, 0, 4)")
        self.e("s_mov_b32 s91, 0\ns_mov_b32 s90, 0\ns_mov_b32 s89, 0")
        self.e("v_mov_b32 v221, 0")
        self.e("s_lshl_b32 s87, s21, 7\ns_add_u32 s87, s87, %d" % WS_XT)
        self.e("v_and_b32 v222, 15, v0\nv_lshlrev_b32 v222, 3, v222")
        self.e("s_lshl_b32 s32, s22, 3\nv_mov_b32 v223, s32")
    def service_step(self, blocking=False):
        L = self.u("SV")
        if blocking: self.label(L + "_TOP");
        self.e("s_cmp_eq_u32 s91, 2\ns_cbranch_scc1 %s_END" % L)
        self.e("s_waitcnt vmcnt(%d)" % (0 if blocking else self.ndma_iter))
        self.e("s_cmp_eq_u32 s91, 1\ns_cbranch_scc1 %s_S1" % L)
        self.e("s_cmp_eq_u32 s89, 0\ns_cbranch_scc1 %s_LD0" % L)
        self.e("v_readfirstlane_b32 s90, v220")
        self.e("s_cmp_eq_u32 s90, 0\ns_cbranch_scc1 %s_LD0" % L)
        self.e("v_mov_b32 v224, s90\nv_mov_b32 v225, s88")
        self.e("s_mov_b64 s[76:77], exec\ns_mov_b64 exec, 1")
        self.e("buffer_store_dwordx2 v[224:225], v223, s[12:15], s87 offen sc1")
        self.e("s_mov_b64 exec, s[76:77]")
        self.e("s_mov_b32 s91, 1\ns_branch %s_LD1" % L)
        self.label(L + "_LD0")
        self.e("global_load_dword v220, v221, s[70:71] sc1\ns_mov_b32 s89, 1\ns_branch %s_END" % L)
        self.label(L + "_S1")
        self.e("v_cmp_eq_u32 vcc, s90, v226\ns_nop 1\ns_and_b32 s32, vcc_lo, 0xffff\ns_cmp_eq_u32 s32, 0xffff\ns_cbranch_scc0 %s_LD1" % L)
        self.e("v_cmp_eq_u32 vcc, s88, v227\ns_nop 1\ns_and_b32 s32, vcc_lo, 0xffff\ns_cmp_eq_u32 s32, 0xffff\ns_cselect_b32 s86, 1, 0")
        if self.force_slow: self.e("s_mov_b32 s86, 0")
        self.e("v_mov_b32 v224, s90\nv_mov_b32 v225, s86\nv_mov_b32 v228, %d" % SYNC_OFF)
        self.e("ds_write_b64 v228, v[224:225]\ns_waitcnt lgkmcnt(0)")
        self.e("s_mov_b32 s91, 2\ns_branch %s_END" % L)
        self.label(L + "_LD1")
        self.e("buffer_load_dwordx2 v[226:227], v222, s[12:15], s87 offen sc1")
        self.label(L + "_END")
        if blocking:
            self.e("s_cmp_eq_u32 s91, 2\ns_cbranch_scc1 %s_FIN" % L)
            self.e("s_add_u32 s85, s85, 1\ns_cmp_lt_u32 s85, 0x4000\ns_cbranch_scc0 %s_FIN" % L)
            self.e("s_branch %s_TOP" % L)
            self.label(L + "_FIN")
    def service_hook(self, s):
        L = self.u("SVH")
        self.e("s_cmp_eq_u32 s20, 7\ns_cbranch_scc0 %s" % L)
        if s == "final":
            self.e("s_mov_b32 s85, 0")
            self.service_step(blocking=True)
        else:
            self.service_step()
        self.label(L)
    def read_sync(self, vtmp):
        self.e("v_mov_b32 v%d, %d\nds_read_b64 v[%d:%d], v%d\ns_waitcnt lgkmcnt(0)" % (vtmp, SYNC_OFF, vtmp + 2, vtmp + 3, vtmp))
        self.e("v_readfirstlane_b32 s90, v%d\nv_readfirstlane_b32 s91, v%d" % (vtmp + 2, vtmp + 3))

    def gate_prep(self, stg, fxor_reg):
        L = self.u("GP")
        self.e("s_and_b32 s32, s22, 3\ns_lshl_b32 s32, s32, 2\ns_add_u32 s32, s32, s30\ns_lshl_b32 s33, s32, 10")
        self.e("v_lshlrev_b32 v207, 4, v0\nv_add_u32 v207, s33, v207")
        self.e("v_add_u32 v212, %d, v207\nv_add_u32 v213, %d, v207" % (stg, 2 * stg))
        self.e("v_and_b32 v206, 7, v0\nv_xor_b32 v206, v206, v%d\nv_lshlrev_b32 v206, 4, v206\nv_add_u32 v206, %d, v206" % (fxor_reg, GW_OFF))
        self.e("v_mov_b32 v204, 0\nv_mov_b32 v218, 0")
        self.e("s_lshr_b32 s33, s22, 2\ns_and_b32 s33, s33, 3")
        self.e("s_lshl_b32 s34, s21, 2\ns_add_u32 s34, s34, s33\ns_lshl_b32 s34, s34, 7\ns_lshl_b32 s32, s32, 3\ns_add_u32 s34, s34, s32\ns_lshl_b32 s34, s34, 2\ns_add_u32 s34, s34, %d" % WS_G)
        self.e("v_lshrrev_b32 v214, 3, v0\nv_lshlrev_b32 v214, 2, v214\nv_add_u32 v214, s34, v214")
    def gate_dma(self):
        L = self.u("GD")
        self.e("s_cmp_eq_u32 s30, 3\ns_cbranch_scc0 %s" % L)
        self.e("v_lshlrev_b32 v205, 4, v0")
        self.e("s_mov_b32 m0, %d\ns_nop 0" % GW_OFF)
        self.e("buffer_load_dwordx4 v205, s[80:83], 0 offen lds")
        self.e("s_mov_b32 m0, %d\ns_movk_i32 s32, 1024" % (GW_OFF + 1024))
        self.e("buffer_load_dwordx4 v205, s[80:83], s32 offen lds")
        self.label(L)
    def gate_step(self, s):
        a = [207, 212, 213][s % 3]
        self.e("ds_read_b128 v[200:203], v%d\nds_read_b128 v[208:211], v206 offset:%d\ns_waitcnt lgkmcnt(0)" % (a, 128 * s))
        for i in range(4):
            self.e("v_lshlrev_b32 v216, 16, v%d\nv_lshlrev_b32 v217, 16, v%d\nv_and_b32 v219, 0xffff0000, v%d\nv_and_b32 v229, 0xffff0000, v%d" % (200 + i, 208 + i, 200 + i, 208 + i))
            self.e("v_fmac_f32 v204, v216, v217\nv_fmac_f32 v218, v219, v229")
    def gate_finish(self):
        self.e("v_add_f32 v204, v204, v218\ns_nop 1")
        self.e("v_add_f32_dpp v204, v204, v204 quad_perm:[1,0,3,2] row_mask:0xf bank_mask:0xf\ns_nop 1")
        self.e("v_add_f32_dpp v204, v204, v204 quad_perm:[2,3,0,1] row_mask:0xf bank_mask:0xf\ns_nop 1")
        self.e("v_add_f32_dpp v204, v204, v204 row_half_mirror row_mask:0xf bank_mask:0xf")
        self.e("v_mul_f32 v204, 0xbfb8aa3b, v204\nv_exp_f32 v204, v204\ns_nop 0\nv_add_f32 v204, 1.0, v204\nv_rcp_f32 v204, v204")
    def gate_store(self):
        L = self.u("GS")
        self.e("v_and_b32 v205, 7, v0\nv_cmp_eq_u32 vcc, 0, v205\ns_and_saveexec_b64 s[76:77], vcc")
        self.e("s_cmp_eq_u32 s91, 1\ns_cbranch_scc1 %s_F" % L)
        self.e("buffer_store_dword v204, v214, s[12:15], 0 offen sc1\ns_branch %s_E" % L)
        self.label(L + "_F")
        self.e("buffer_store_dword v204, v214, s[12:15], 0 offen")
        self.label(L + "_E")
        self.e("s_mov_b64 exec, s[76:77]")

    def touch_p1(self):
        if not self.touch: return
        L = self.u("T")
        self.e("v_lshlrev_b32 v240, 7, v0")
        self.e("s_cmp_eq_u32 s20, 0\ns_cbranch_scc0 %s_1" % L)
        self.e("s_mul_i32 s33, s2, 10240")
        self.e("buffer_load_dword v248, v240, s[4:7], s33 offen")
        self.e("s_add_u32 s33, s33, 8192\nv_cmp_gt_u32 vcc, 16, v0\ns_and_saveexec_b64 s[76:77], vcc")
        self.e("buffer_load_dword v249, v240, s[4:7], s33 offen\ns_mov_b64 exec, s[76:77]\ns_branch %s_E" % L)
        self.label(L + "_1")
        self.e("s_cmp_eq_u32 s20, 1\ns_cbranch_scc0 %s_2" % L)
        srd(self.k, 48, 42, SZ['w1'])
        self.e("s_mul_i32 s33, s2, 8640")
        self.e("buffer_load_dword v248, v240, s[48:51], s33 offen")
        self.e("s_add_u32 s33, s33, 8192\nv_cmp_gt_u32 vcc, 4, v0\ns_and_saveexec_b64 s[76:77], vcc")
        self.e("buffer_load_dword v249, v240, s[48:51], s33 offen\ns_mov_b64 exec, s[76:77]\ns_branch %s_E" % L)
        self.label(L + "_2")
        self.e("s_cmp_eq_u32 s20, 2\ns_cbranch_scc0 %s_E" % L)
        self.e("s_mul_i32 s33, s2, 3200\nv_cmp_gt_u32 vcc, 25, v0\ns_and_saveexec_b64 s[76:77], vcc")
        srd(self.k, 48, 60, SZ['bre'])
        self.e("buffer_load_dword v248, v240, s[48:51], s33 offen")
        srd(self.k, 52, 62, SZ['bim'])
        self.e("buffer_load_dword v249, v240, s[52:55], s33 offen\ns_mov_b64 exec, s[76:77]")
        self.label(L + "_E")
    def touch_p2(self):
        if not self.touch: return
        L = self.u("T2")
        self.e("s_cmp_eq_u32 s20, 3\ns_cbranch_scc0 %s" % L)
        self.e("s_load_dwordx2 s[48:49], s[0:1], %d\ns_load_dwordx2 s[50:51], s[0:1], %d\ns_load_dwordx2 s[52:53], s[0:1], %d\ns_waitcnt lgkmcnt(0)" % (KA['w2'], KA['cre'], KA['cim']))
        self.e("v_lshlrev_b32 v240, 7, v0")
        srd(self.k, 56, 48, SZ['w2'])
        self.e("s_mul_i32 s33, s2, 8640")
        self.e("buffer_load_dword v248, v240, s[56:59], s33 offen")
        self.e("s_add_u32 s33, s33, 8192\nv_cmp_gt_u32 vcc, 4, v0\ns_and_saveexec_b64 s[76:77], vcc")
        self.e("buffer_load_dword v249, v240, s[56:59], s33 offen\ns_mov_b64 exec, s[76:77]")
        self.e("s_mul_i32 s33, s2, 3200\nv_cmp_gt_u32 vcc, 25, v0\ns_and_saveexec_b64 s[76:77], vcc")
        srd(self.k, 56, 50, SZ['cre'])
        self.e("buffer_load_dword v250, v240, s[56:59], s33 offen")
        srd(self.k, 56, 52, SZ['cim'])
        self.e("buffer_load_dword v251, v240, s[56:59], s33 offen\ns_mov_b64 exec, s[76:77]")
        self.label(L)

    def ffn_compute(self):
        k = self.k; e = self.e
        ACC, BIAS, F0X, F0W, F1X, F1W = 132, 104, 16, 32, 60, 76
        AX0, AX1, AW = 4, 5, 6
        def acc(m, n): return ACC + (m * 7 + n) * 4
        e("s_lshr_b32 s30, s20, 1\ns_and_b32 s31, s20, 1")
        e("v_lshrrev_b32 v1, 4, v0\nv_and_b32 v2, 15, v0")
        e("s_mul_i32 s33, s31, 112\ns_add_u32 s33, s33, s24\ns_lshl_b32 s33, s33, 1")
        e("v_lshlrev_b32 v14, 3, v1")
        for n in range(7):
            e("buffer_load_dwordx2 %s, v14, s[16:19], s33 offen offset:%d" % (vr(F1X + 2 * n, 2), 32 * n))
        self.touch_p1(); self.touch_p2()
        e("s_lshl_b32 s32, s30, 13")
        e("v_lshrrev_b32 v3, 1, v2\nv_xor_b32 v3, v1, v3\nv_lshlrev_b32 v3, 4, v3\nv_lshl_add_u32 v3, v2, 7, v3")
        e("v_add_u32 v%d, s32, v3\nv_xor_b32 v%d, 64, v%d" % (AX0, AX1, AX0))
        e("v_bfe_u32 v13, v0, 2, 2\nv_and_b32 v14, 3, v0\nv_lshl_add_u32 v15, v1, 3, v13\nv_lshlrev_b32 v15, 7, v15\nv_lshl_add_u32 v15, v14, 3, v15")
        e("v_lshrrev_b32 v13, 1, v13\nv_and_b32 v14, 1, v1\nv_lshl_or_b32 v13, v14, 1, v13")
        e("s_mul_i32 s32, s31, 224\ns_add_u32 s32, s32, s28")
        for n in range(7):
            e("s_add_u32 s33, s32, %d" % (32 * n))
            e("s_lshr_b32 s34, s33, 7\ns_lshl_b32 s34, s34, 13\ns_add_u32 s34, s34, 16384\ns_bfe_u32 s35, s33, 0x20005")
            e("v_xor_b32 v14, s35, v13\nv_lshl_add_u32 v14, v14, 5, v15\nv_add_u32 v%d, s34, v14" % (AW + n))
        e("s_lshl_b32 s32, s30, 12\nv_lshlrev_b32 v13, 4, v0\nv_add_u32 v13, s32, v13")
        nt = 0
        if self.touch:
            e("s_cmp_eq_u32 s20, 3\ns_cbranch_scc1 FFN_BW4\ns_waitcnt vmcnt(2)\ns_branch FFN_BWE")
            self.label("FFN_BW4"); e("s_waitcnt vmcnt(4)"); self.label("FFN_BWE")
        else:
            e("s_waitcnt vmcnt(0)")
        for n in range(7):
            for h in range(2):
                src = F1X + 2 * n + h
                e("v_lshlrev_b32 v%d, 16, v%d\nv_and_b32 v%d, 0xffff0000, v%d" % (BIAS + 4 * n + 2 * h, src, BIAS + 4 * n + 2 * h + 1, src))
        self.stamp(1)
        e("s_barrier")
        self.stamp(2)
        def reads(kk, which):
            X = F0X if which == 0 else F1X; W = F0W if which == 0 else F1W; ax = AX0 if kk == 0 else AX1
            out = []
            for n in range(7):
                for h in range(2):
                    out.append("ds_read_b64_tr_b16 %s, v%d offset:%d" % (vr(W + 4 * n + 2 * h, 2), AW + n, kk * 4096 + h * 512))
                if n < 4: out.append("ds_read_b128 %s, v%d offset:%d" % (vr(X + 4 * n), ax, n * 2048))
            return out
        def mfmas(which, first):
            X = F0X if which == 0 else F1X; W = F0W if which == 0 else F1W
            return ["v_mfma_f32_16x16x32_bf16 %s, %s, %s, %s" % (vr(acc(m, n)), vr(W + 4 * n), vr(X + 4 * m), vr(BIAS + 4 * n) if first else vr(acc(m, n)))
                    for n in range(7) for m in range(4)]
        self.gemm_loop("FFN", reads, mfmas, [AX0, AX1] + [AW + n for n in range(7)], STG_F, NST)
        self.stamp(3)
        e("s_barrier")
        self.read_sync(244)
        e("s_mul_i32 s33, s21, 54\ns_lshr_b32 s34, s24, 5\ns_add_u32 s33, s33, s34\ns_lshl_b32 s33, s33, 13")
        T = 16
        def relu2_pack(m, n, dst):
            a = acc(m, n)
            for r in range(4): e("v_max_f32 v%d, 0, v%d" % (a + r, a + r))
            e("v_pk_mul_f32 %s, %s, %s\nv_pk_mul_f32 %s, %s, %s" % (vr(a, 2), vr(a, 2), vr(a, 2), vr(a + 2, 2), vr(a + 2, 2), vr(a + 2, 2)))
            e("v_cvt_pk_bf16_f32 v%d, v%d, v%d\nv_cvt_pk_bf16_f32 v%d, v%d, v%d" % (dst, a, a + 1, dst + 1, a + 2, a + 3))
        def epi(wf, fl):
            tc = [0]
            def tmp():
                t = T + (tc[0] % 8) * 4; tc[0] += 1
                return t
            if wf == 0: pairs = [(0, 1, 0), (2, 3, 1), (4, 5, 2)]; single = (6, 3, 0)
            else: pairs = [(1, 2, 4), (3, 4, 5), (5, 6, 6)]; single = (0, 3, 8)
            for (n0, n1, ks) in pairs:
                e("s_add_u32 s34, s33, %d" % (ks * 8192))
                for m in range(4):
                    t = tmp(); relu2_pack(m, n0, t); relu2_pack(m, n1, t + 2)
                    e("buffer_store_dwordx4 %s, v13, s[12:15], s34 offen offset:%d %s" % (vr(t), m * 1024, fl))
            n, ks, o = single
            e("s_add_u32 s34, s33, %d" % (ks * 8192))
            for m in range(4):
                t = tmp(); relu2_pack(m, n, t)
                e("buffer_store_dwordx2 %s, v13, s[12:15], s34 offen offset:%d %s" % (vr(t, 2), m * 1024 + o, fl))
        e("s_lshl_b32 s32, s91, 1\ns_or_b32 s32, s32, s31")
        e("s_cmp_eq_u32 s32, 2\ns_cbranch_scc1 FE_F0\ns_cmp_eq_u32 s32, 3\ns_cbranch_scc1 FE_F1\ns_cmp_eq_u32 s32, 0\ns_cbranch_scc1 FE_S0")
        epi(1, "sc1"); e("s_branch FE_END")
        self.label("FE_S0"); epi(0, "sc1"); e("s_branch FE_END")
        self.label("FE_F1"); epi(1, ""); e("s_branch FE_END")
        self.label("FE_F0"); epi(0, "")
        self.label("FE_END")
        self.stamp(4)
        e("s_waitcnt vmcnt(0)")
        self.stamp(5)
        e("s_barrier")

    def x_loader_common(self):
        e = self.e
        e("s_sub_u32 s30, s20, 4")
        if self.prio: e("s_setprio 2")
        e("v_lshrrev_b32 v1, 3, v0\nv_and_b32 v4, 7, v0\nv_lshrrev_b32 v5, 4, v0\nv_mul_u32_u24 v7, 1280, v1")
        e("s_lshl_b32 s32, s21, 7\ns_lshl_b32 s33, s30, 3\ns_add_u32 s32, s32, s33\ns_mul_i32 s40, s32, 1280")

    def ffn_loader(self):
        e = self.e
        self.x_loader_common()
        e("s_and_b32 s31, s30, 1")
        e("s_lshl_b32 s32, s31, 2\nv_add_u32 v215, s32, v5\nv_and_b32 v215, 7, v215")
        e("v_xor_b32 v6, v4, v215\nv_lshlrev_b32 v6, 4, v6\nv_add_u32 v2, v6, v7")
        e("v_and_b32 v6, 1, v5\ns_lshl_b32 s32, s31, 1\nv_or_b32 v6, s32, v6\nv_lshlrev_b32 v6, 1, v6\nv_xor_b32 v6, v4, v6\nv_lshlrev_b32 v6, 4, v6")
        e("v_mul_u32_u24 v7, 3456, v1\nv_add_u32 v3, v6, v7")
        e("s_lshl_b32 s33, s30, 3\ns_mul_i32 s41, s33, 3456\ns_add_u32 s41, s41, s26")
        e("s_lshl_b32 s42, s30, 10\ns_mov_b32 s43, 0")
        def dma(idx):
            if idx < 4:
                e("s_add_u32 m0, s42, %d\ns_add_u32 s44, s40, %d" % (idx * 4096, idx * 32 * 1280))
                e("buffer_load_dwordx4 v2, s[4:7], s44 offen lds")
            else:
                G, u = (idx - 4) // 2, (idx - 4) % 2
                e("s_add_u32 m0, s42, %d\ns_add_u32 s44, s41, %d" % (16384 + G * 8192 + u * 4096, u * 32 * 3456 + G * 128))
                e("buffer_load_dwordx4 v3, s[8:11], s44 offen lds")
            if first[0] and idx == 11:
                first[0] = False
                self.gate_dma(); self.gate_prep(STG_F, 215); self.service_init()
        first = [True]
        def next_stage():
            e("s_add_u32 s40, s40, 128\ns_add_u32 s41, s41, %d" % (64 * 3456))
            self.lds_next(42, 43, STG_F)
        def after(s):
            self.gate_step(s)
            if 0 <= s <= 7: self.service_hook(s)
        self.stamp(0)
        self.loader_seq(NST, 12, dma, next_stage, after, stamp_base=1)
        self.gate_finish()
        self.service_hook("final")
        e("s_barrier")
        self.read_sync(230)
        self.gate_store()

    def ssm_compute(self):
        k = self.k; e = self.e
        ACC, F0X, F0W, F1X, F1W = 128, 16, 32, 52, 68
        AX0, AX1, AW0, AW1 = 4, 5, 6, 7
        SK, SV, SZ_, SZ2 = 88, 108, 113, 118
        def acc(m, n): return ACC + (m * 5 + n) * 4
        kA = lambda n: SK + 4 * n; kBB = lambda n: SK + 4 * n + 1; kAL = lambda n: SK + 4 * n + 2; kBE = lambda n: SK + 4 * n + 3
        e("s_lshr_b32 s30, s20, 1\ns_and_b32 s31, s20, 1")
        self.touch_p1(); self.touch_p2()
        L = self.u("NN")
        e("s_or_b32 s32, s2, s20\ns_cmp_lg_u32 s32, 0\ns_cbranch_scc1 %s" % L)
        e("s_mov_b64 s[76:77], exec\ns_mov_b64 exec, 1")
        e("v_mov_b32 v244, %d\nbuffer_load_dword v245, v244, s[12:15], 0 offen sc1\ns_waitcnt vmcnt(0)" % WS_EPOCH)
        e("v_add_u32 v245, 1, v245\nv_or_b32 v245, 1, v245\nv_mov_b32 v246, 0")
        e("buffer_store_dword v245, v244, s[12:15], 0 offen sc1\nglobal_store_dword v246, v245, s[70:71] sc1")
        e("s_mov_b64 exec, s[76:77]")
        self.label(L)
        e("v_lshrrev_b32 v1, 4, v0\nv_and_b32 v2, 15, v0")
        e("s_mul_i32 s33, s22, 80\ns_mul_i32 s34, s31, 40\ns_add_u32 s33, s33, s34")
        e("v_lshrrev_b32 v3, 1, v2\nv_add_u32 v8, s33, v3")
        e("v_lshrrev_b32 v10, 2, v2\nv_and_b32 v11, 3, v2\nv_lshrrev_b32 v12, 1, v11\nv_lshl_or_b32 v12, v10, 1, v12\nv_xor_b32 v12, v1, v12\nv_lshlrev_b32 v12, 4, v12")
        e("v_lshl_add_u32 v10, v10, 4, v11\nv_lshl_add_u32 v12, v10, 7, v12\ns_lshl_b32 s32, s30, 13")
        e("v_add_u32 v%d, s32, v12\nv_xor_b32 v%d, 64, v%d" % (AX0, AX1, AX0))
        e("v_and_b32 v10, 1, v2\nv_and_b32 v11, 6, v3\nv_or_b32 v11, v11, v10\nv_xor_b32 v11, v1, v11\nv_lshlrev_b32 v11, 4, v11\nv_lshl_add_u32 v11, v3, 7, v11")
        e("v_mul_u32_u24 v12, 10240, v10\nv_add_u32 v11, v11, v12\ns_mul_i32 s32, s31, 5120\ns_add_u32 s32, s32, 16384")
        e("v_add_u32 v%d, s32, v11\nv_xor_b32 v%d, 64, v%d" % (AW0, AW1, AW0))
        e("s_lshl_b32 s32, s30, 2\nv_add_u32 v12, s32, v1")
        for n in range(5):
            e("v_add_u32 v13, %d, v8\nv_lshrrev_b32 v14, 6, v13\nv_and_b32 v13, 63, v13\nv_lshl_add_u32 v14, v14, 1, v10\nv_lshl_add_u32 v14, v14, 6, v13\nv_lshlrev_b32 v14, 8, v14" % (8 * n))
            e("v_and_b32 v15, 3, v13\nv_bfe_u32 v13, v13, 3, 1\nv_lshl_or_b32 v15, v13, 2, v15\nv_xor_b32 v15, v12, v15\nv_lshl_add_u32 v%d, v15, 5, v14" % (SV + n))
        e("v_mul_u32_u24 v13, 640, v12\nv_lshl_add_u32 v13, v2, 2, v13\ns_mul_i32 s32, s31, 320\ns_add_u32 s32, s32, %d\nv_add_u32 v13, s32, v13" % ET_OFF)
        e("s_mul_i32 s32, s31, 1280\ns_add_u32 s32, s32, %d\nv_lshlrev_b32 v14, 4, v2\nv_add_u32 v14, s32, v14" % KT_OFF)
        self.stamp(1)
        e("s_barrier")
        self.stamp(2)
        def reads(kk, which):
            X = F0X if which == 0 else F1X; W = F0W if which == 0 else F1W
            ax = AX0 if kk == 0 else AX1; aw = AW0 if kk == 0 else AW1
            out = []
            for n in range(5):
                out.append("ds_read_b128 %s, v%d offset:%d" % (vr(W + 4 * n), aw, n * 1024))
                if n < 4: out.append("ds_read_b128 %s, v%d offset:%d" % (vr(X + 4 * n), ax, n * 512))
            return out
        def mfmas(which, first):
            X = F0X if which == 0 else F1X; W = F0W if which == 0 else F1W
            return ["v_mfma_f32_16x16x32_bf16 %s, %s, %s, %s" % (vr(acc(m, n)), vr(X + 4 * m), vr(W + 4 * n), "0" if first else vr(acc(m, n)))
                    for n in range(5) for m in range(4)]
        self.gemm_loop("SSM", reads, mfmas, [AX0, AX1, AW0, AW1], STG_S, NST,
                       last_fill=["ds_read_b128 %s, v14 offset:%d" % (vr(SK + 4 * n), 256 * n) for n in range(5)])
        self.stamp(3)
        e("s_waitcnt lgkmcnt(0)\ns_nop 4")
        def reg(tau, n): return acc(tau >> 2, n) + (tau & 3)
        for tau in range(1, 16):
            for n in range(5): e("v_fmac_f32 v%d, v%d, v%d" % (reg(tau, n), kA(n), reg(tau - 1, n)))
            for n in range(5): e("v_fmac_f32_dpp v%d, v%d, v%d %s" % (reg(tau, n), reg(tau - 1, n), kBB(n), DPP))
        for n in range(5): e("ds_write_b32 v13, v%d offset:%d" % (reg(15, n), 64 * n))
        e("s_waitcnt lgkmcnt(0)\ns_barrier")
        self.stamp(4)
        def preg(tau, n):
            i = tau * 5 + n
            return 16 + i if i < 72 else 208 + (i - 72)
        for tau in range(16):
            for n in range(5): e("v_mul_f32 v%d, v%d, v%d" % (preg(tau, n), kAL(n), reg(tau, n)))
            for n in range(5): e("v_fmac_f32_dpp v%d, v%d, v%d %s" % (preg(tau, n), reg(tau, n), kBE(n), DPP))
        NB = 220
        for n in range(5): e("v_sub_f32 v%d, 0, v%d" % (NB + n, kBB(n)))
        self.read_sync(244)
        e("s_mul_i32 s33, s21, %d\ns_add_u32 s33, s33, %d" % (20 * 16384, WS_MIDS))
        e("s_barrier")
        self.stamp(5)
        for n in range(5): e("ds_read_b32 v%d, v13 offset:%d" % (SZ_ + n, 5120 + 64 * n))
        e("s_waitcnt lgkmcnt(0)")
        for n in range(5): e("v_mul_f32 v%d, v%d, v%d" % (SZ2 + n, kA(n), SZ_ + n))
        for n in range(5): e("v_fmac_f32_dpp v%d, v%d, v%d %s" % (SZ2 + n, SZ_ + n, kBB(n), DPP))
        for n in range(5): e("v_mul_f32 v%d, v%d, v%d" % (SZ_ + n, kAL(n), SZ2 + n))
        for n in range(5): e("v_fmac_f32_dpp v%d, v%d, v%d %s" % (SZ_ + n, SZ2 + n, kBE(n), DPP))
        def post(fl):
            cur, nxt = SZ_, SZ2
            TC = 228; cnt = [0]
            def pack_store(ch):
                for n in range(5):
                    t = TC + (cnt[0] % 4) * 4; cnt[0] += 1
                    for mm in range(2):
                        a = acc(2 * ch + mm, n)
                        e("v_cvt_pk_bf16_f32 v%d, v%d, v%d\nv_cvt_pk_bf16_f32 v%d, v%d, v%d" % (t + 2 * mm, a, a + 1, t + 2 * mm + 1, a + 2, a + 3))
                    e("buffer_store_dwordx4 %s, v%d, s[12:15], s33 offen offset:%d %s" % (vr(t), SV + n, 16 * ch, fl))
            for tau in range(16):
                for n in range(5): e("v_add_f32 v%d, v%d, v%d" % (reg(tau, n), preg(tau, n), cur + n))
                if tau < 15:
                    for n in range(5): e("v_mul_f32 v%d, v%d, v%d" % (nxt + n, kA(n), cur + n))
                    for n in range(5): e("v_fmac_f32_dpp v%d, v%d, v%d %s" % (nxt + n, cur + n, NB + n, DPP))
                    cur, nxt = nxt, cur
                if tau == 8: pack_store(0)
            pack_store(1)
        e("s_cmp_eq_u32 s91, 1\ns_cbranch_scc1 SP_F")
        post("sc1"); e("s_branch SP_E")
        self.label("SP_F"); post("")
        self.label("SP_E")
        self.stamp(6)
        e("s_waitcnt vmcnt(0)")
        self.stamp(7)
        e("s_barrier")

    def ssm_loader(self):
        k = self.k; e = self.e
        RA, RB, QA, QB = 100, 108, 120, 136
        self.x_loader_common()
        e("s_and_b32 s31, s30, 1")
        e("s_cmp_eq_u32 s31, 1\ns_cselect_b32 s8, s56, s8\ns_cselect_b32 s9, s57, s9")
        e("s_lshr_b32 s32, s30, 1\ns_lshl_b32 s32, s32, 1\nv_and_b32 v6, 1, v5\nv_or_b32 v6, s32, v6\nv_xor_b32 v6, v4, v6\nv_lshlrev_b32 v6, 4, v6")
        e("v_add_u32 v2, v6, v7\nv_xor_b32 v8, 64, v2")
        e("v_and_b32 v6, 6, v1\nv_or_b32 v6, s31, v6\nv_xor_b32 v6, v4, v6\nv_lshlrev_b32 v6, 4, v6\nv_add_u32 v3, v6, v7")
        e("s_mul_i32 s41, s22, 80\ns_lshr_b32 s33, s30, 1\ns_lshl_b32 s34, s33, 3\ns_add_u32 s41, s41, s34\ns_mul_i32 s41, s41, 1280")
        e("s_lshl_b32 s42, s30, 10")
        e("s_mul_i32 s46, s31, 10240\ns_lshl_b32 s34, s33, 10\ns_add_u32 s46, s46, s34\ns_add_u32 s46, s46, 16384")
        e("s_mov_b32 s47, 0\ns_mov_b32 s43, 0")
        first = [True]
        def dma(idx):
            if idx < 4:
                e("s_add_u32 s44, s42, s47\ns_add_u32 m0, s44, %d\ns_add_u32 s44, s40, %d" % (idx * 4096, idx * 32 * 1280))
                e("buffer_load_dwordx4 v%d, s[4:7], s44 offen lds" % (2 if idx % 2 == 0 else 8))
            else:
                u = idx - 4
                e("s_add_u32 s44, s46, s47\ns_add_u32 m0, s44, %d\ns_add_u32 s44, s41, %d" % (u * 2048, u * 16 * 1280))
                e("buffer_load_dwordx4 v3, s[8:11], s44 offen lds")
            if first[0] and idx == 8:
                first[0] = False
                self.gate_dma()
                e("s_and_b32 s32, s22, 3\ns_lshl_b32 s32, s32, 2\ns_add_u32 s32, s32, s30\ns_lshr_b32 s32, s32, 1\ns_and_b32 s32, s32, 3\ns_lshl_b32 s32, s32, 1")
                e("v_and_b32 v215, 1, v5\nv_or_b32 v215, s32, v215")
                self.gate_prep(STG_S, 215); self.service_init()
                e("s_lshl_b32 s32, s30, 6\nv_add_u32 v10, s32, v0\nv_lshrrev_b32 v11, 1, v10\ns_mul_i32 s32, s22, 80\nv_add_u32 v11, s32, v11\nv_lshlrev_b32 v11, 1, v11")
                e("buffer_load_ushort v20, v11, s[16:19], 0 offen\nbuffer_load_ushort v21, v11, s[48:51], 0 offen\nbuffer_load_ushort v22, v11, s[52:55], 0 offen")
        def next_stage():
            e("s_add_u32 s40, s40, 128\ns_add_u32 s41, s41, 128")
            self.lds_next(47, 43, STG_S)
        def cmul(da, db, xa, xb, ya, yb):
            e("v_mul_f32 v%d, v%d, v%d\nv_mul_f32 v%d, v%d, v%d\nv_fma_f32 v%d, -v%d, v%d, v%d\nv_fmac_f32 v%d, v%d, v%d" % (da, xa, ya, db, xa, yb, da, xb, yb, da, db, xb, ya))
        def csq(va, vb, t):
            e("v_mul_f32 v%d, v%d, v%d\nv_mul_f32 v%d, v%d, v%d\nv_fma_f32 v%d, -v%d, v%d, v%d\nv_add_f32 v%d, v%d, v%d" % (t, va, vb, va, va, va, va, vb, vb, va, vb, t, t))
        def consts():
            t0 = 30
            e("v_lshlrev_b32 v20, 16, v20\nv_lshlrev_b32 v21, 16, v21\nv_lshlrev_b32 v22, 16, v22")
            e("v_mul_f32 v22, 0x3fb8aa3b, v22\nv_exp_f32 v22, v22\ns_nop 0\nv_cvt_pk_bf16_f32 v22, v22, v22\nv_lshlrev_b32 v22, 16, v22")
            e("v_mul_f32 v30, v22, v20\nv_mul_f32 v31, v22, v21\nv_mul_f32 v30, 0x3fb8aa3b, v30\nv_exp_f32 v30, v30")
            e("v_mul_f32 v31, 0.15915494, v31\nv_fract_f32 v31, v31\ns_nop 0\nv_cos_f32 v32, v31\nv_sin_f32 v33, v31\ns_nop 0")
            e("v_mul_f32 v23, v30, v32\nv_mul_f32 v24, v30, v33")
            e("v_and_b32 v27, 1, v0\nv_cvt_f32_u32 v27, v27\nv_fma_f32 v27, v27, 2.0, -1.0")
            e("v_add_f32 v30, -1.0, v23\nv_mul_f32 v31, v20, v20\nv_fmac_f32 v31, v21, v21\nv_rcp_f32 v31, v31")
            e("v_mul_f32 v32, v30, v20\nv_fmac_f32 v32, v24, v21\nv_mul_f32 v33, v24, v20\nv_fma_f32 v33, -v30, v21, v33")
            e("v_add_f32 v31, v31, v31\nv_mul_f32 v32, v32, v31\nv_mul_f32 v33, v33, v31")
            e("v_mov_b32 v36, v23\nv_mul_f32 v37, v27, v24\nv_mul_f32 v38, v27, v32\nv_sub_f32 v38, 0, v38\nv_sub_f32 v39, 0, v33")
            e("v_lshlrev_b32 v12, 4, v10\nv_add_u32 v12, %d, v12" % KT_OFF)
            e("v_cmp_gt_u32 vcc, 160, v10\ns_and_saveexec_b64 s[74:75], vcc\ns_cbranch_execz SSM_KT_SKIP\nds_write_b128 v12, v[36:39]")
            self.label("SSM_KT_SKIP")
            e("s_mov_b64 exec, s[74:75]")
            e("; SPLIT")
            for _ in range(4): csq(23, 24, 30)
            e("v_mov_b32 v%d, v23\nv_mov_b32 v%d, v24" % (RA + 1, RB + 1))
            for kk in range(2, 8): cmul(RA + kk, RB + kk, RA + kk - 1, RB + kk - 1, RA + 1, RB + 1)
            cmul(QA + 1, QB + 1, RA + 7, RB + 7, RA + 1, RB + 1)
            for i in range(2, 15): cmul(QA + i, QB + i, QA + i - 1, QB + i - 1, QA + 1, QB + 1)
            for kk in range(1, 8): e("v_mul_f32 v%d, v27, v%d" % (RB + kk, RB + kk))
            for i in range(1, 15): e("v_mul_f32 v%d, v27, v%d" % (QB + i, QB + i))
            e("s_waitcnt lgkmcnt(0)")
        lines = k.capture(consts)
        i0 = lines.index("; SPLIT")
        chunks = [lines[:i0]]; rest = lines[i0 + 1:]
        per = (len(rest) + 5) // 6
        for i in range(0, len(rest), per): chunks.append(rest[i:i + per])
        def after(s):
            self.gate_step(s)
            if 0 <= s < len(chunks): k.L.extend(chunks[s])
            if 0 <= s <= 7: self.service_hook(s)
        self.stamp(0)
        self.loader_seq(NST, 9, dma, next_stage, after, stamp_base=1)
        self.gate_finish()
        self.service_hook("final")
        e("v_lshlrev_b32 v12, 2, v10\nv_add_u32 v12, %d, v12\nv_lshlrev_b32 v13, 3, v10" % ET_OFF)
        e("s_mul_i32 s33, s22, %d\ns_add_u32 s33, s33, %d\ns_mul_i32 s34, s21, 1280\ns_add_u32 s34, s34, s33" % (16 * 1280, WS_E))
        e("s_setprio 3")
        e("s_barrier")
        self.stamp(4)
        self.read_sync(230)
        self.gate_store()
        e("s_cmp_ge_u32 s30, 3\ns_cbranch_scc1 SSM_H_BX2")
        e("v_cmp_gt_u32 vcc, 160, v10\ns_and_saveexec_b64 s[74:75], vcc")
        for sg in range(8): e("ds_read_b32 v%d, v12 offset:%d" % (40 + sg, sg * 640))
        e("v_mov_b32 v59, s90")
        e("s_waitcnt lgkmcnt(0)")
        e("v_mov_b32 v58, v47\nv_mul_f32 v56, v%d, v40\nv_mul_f32 v57, v%d, v41" % (RA + 7, RA + 6))
        e("v_fmac_f32_dpp v56, v40, v%d %s\nv_fmac_f32_dpp v57, v41, v%d %s" % (RB + 7, DPP, RB + 6, DPP))
        accs = [58, 56, 57]
        for i, kk in enumerate(range(2, 7)):
            a = accs[i % 3]
            e("v_fmac_f32 v%d, v%d, v%d\nv_fmac_f32_dpp v%d, v%d, v%d %s" % (a, RA + 7 - kk, 40 + kk, a, 40 + kk, RB + 7 - kk, DPP))
        e("v_add_f32 v58, v58, v56\nv_add_f32 v58, v58, v57")
        e("buffer_store_dwordx2 v[58:59], v13, s[12:15], s34 offen sc1")
        self.stamp(5)
        e("v_mov_b32 v60, 0\ns_mov_b32 s36, 0")
        def lb_loads():
            L = self.u("LB")
            for i in range(15):
                e("s_cmp_le_u32 s21, %d\ns_cbranch_scc1 %s" % (i, L))
                e("s_sub_u32 s35, s34, %d\nbuffer_load_dwordx2 v[%d:%d], v13, s[12:15], s35 offen sc1" % ((i + 1) * 1280, 64 + 2 * i, 65 + 2 * i))
            self.label(L)
        lb_loads()
        e("v_mov_b32 v50, 0\nv_mov_b32 v51, v40")
        for kk in range(1, 7):
            e("v_fma_f32 v%d, v%d, v%d, v%d\ns_nop 0\nv_fmac_f32_dpp v%d, v%d, v%d %s\ns_nop 0" % (51 + kk, RA + 1, 50 + kk, 40 + kk, 51 + kk, 50 + kk, RB + 1, DPP))
        e("s_cmp_eq_u32 s21, 0\ns_cbranch_scc1 SSM_H_HDONE")
        self.label("SSM_H_POLL")
        e("s_waitcnt vmcnt(0)\ns_mov_b64 s[76:77], exec")
        for i in range(15):
            if i > 0: e("s_cmp_le_u32 s21, %d\ns_cbranch_scc1 SSM_H_CHECKED" % i)
            e("v_cmp_eq_u32 vcc, s90, v%d\ns_and_b64 s[76:77], s[76:77], vcc" % (65 + 2 * i))
        self.label("SSM_H_CHECKED")
        e("s_cmp_eq_u64 s[76:77], exec\ns_cbranch_scc1 SSM_H_OK")
        e("s_add_u32 s36, s36, 1\ns_cmp_lt_u32 s36, 0x4000\ns_cbranch_scc0 SSM_H_OK")
        lb_loads()
        e("s_branch SSM_H_POLL")
        self.label("SSM_H_OK")
        self.stamp(6)
        e("v_mov_b32 v60, v64\nv_mov_b32 v61, 0\nv_mov_b32 v62, 0")
        accs = [61, 62, 60]
        for i in range(1, 15):
            a = accs[(i - 1) % 3]
            e("s_cmp_le_u32 s21, %d\ns_cbranch_scc1 SSM_H_HSUM" % i)
            e("v_fmac_f32 v%d, v%d, v%d\nv_fmac_f32_dpp v%d, v%d, v%d %s" % (a, QA + i, 64 + 2 * i, a, 64 + 2 * i, QB + i, DPP))
        self.label("SSM_H_HSUM")
        e("v_add_f32 v60, v60, v61\nv_add_f32 v60, v60, v62")
        self.label("SSM_H_HDONE")
        e("v_add_u32 v12, 5120, v12\ns_nop 0\nds_write_b32 v12, v60")
        for kk in range(1, 8): e("v_fmac_f32 v%d, v%d, v60" % (50 + kk, RA + kk))
        for kk in range(1, 8): e("v_fmac_f32_dpp v%d, v60, v%d %s" % (50 + kk, RB + kk, DPP))
        for kk in range(1, 8): e("ds_write_b32 v12, v%d offset:%d" % (50 + kk, kk * 640))
        e("s_waitcnt lgkmcnt(0)\ns_mov_b64 exec, s[74:75]")
        self.label("SSM_H_BX2")
        e("s_barrier")
        self.stamp(7)

    def p2_setup_scalars(self, typ):
        e = self.e
        e("s_and_b32 s23, s22, 3\ns_lshr_b32 s24, s22, 2")
        if typ == "ffn": e("s_cmp_eq_u32 s24, 2\ns_cselect_b32 s25, 14, 13")
        else: e("s_mov_b32 s25, 10")

    def p2_compute(self, typ, pfx):
        k = self.k; e = self.e
        ACC, F0M, F0W, F1M, F1W = 128, 16, 32, 52, 68
        AM, AW = 4, 8
        def acc(m, n): return ACC + (m * 5 + n) * 4
        self.p2_setup_scalars(typ)
        e("s_load_dwordx2 s[40:41], s[0:1], %d\ns_load_dwordx2 s[42:43], s[0:1], %d\ns_load_dwordx2 s[44:45], s[0:1], %d" % (KA['out'], KA['dskip'], KA['b2']))
        e("v_lshrrev_b32 v1, 4, v0\nv_and_b32 v2, 15, v0\nv_bfe_u32 v13, v0, 2, 2\nv_and_b32 v14, 3, v0")
        if typ == "ffn":
            e("s_lshl_b32 s32, s30, 12\nv_lshlrev_b32 v%d, 4, v0\nv_add_u32 v%d, s32, v%d" % (AM, AM, AM))
            e("v_lshl_add_u32 v15, v1, 2, v13\nv_lshrrev_b32 v3, 1, v15\nv_and_b32 v3, 3, v3\nv_lshlrev_b32 v15, 7, v15\nv_lshl_add_u32 v15, v14, 3, v15")
            e("s_and_b32 s35, s23, 1\ns_lshl_b32 s35, s35, 6\ns_mul_i32 s32, s31, 160\ns_add_u32 s35, s35, s32")
            for n in range(5):
                e("s_add_u32 s33, s35, %d\ns_lshr_b32 s34, s33, 7\ns_lshl_b32 s34, s34, 13\ns_add_u32 s34, s34, 16384\ns_bfe_u32 s33, s33, 0x20005" % (32 * n))
                e("v_xor_b32 v14, s33, v3\nv_lshl_add_u32 v14, v14, 5, v15\nv_add_u32 v%d, s34, v14" % (AW + n))
            addr_regs = [AM] + [AW + n for n in range(5)]
        else:
            e("v_lshl_add_u32 v15, v1, 3, v13\nv_lshlrev_b32 v15, 8, v15\nv_lshl_add_u32 v15, v14, 3, v15\nv_and_b32 v3, 1, v1\nv_lshl_or_b32 v3, v3, 2, v13")
            e("s_lshl_b32 s32, s30, 2")
            for m in range(4):
                e("s_add_u32 s33, s32, %d\nv_xor_b32 v14, s33, v3\nv_lshl_add_u32 v%d, v14, 5, v15" % (m, AM + m))
            e("v_lshrrev_b32 v3, 1, v2\nv_xor_b32 v3, v1, v3\nv_lshlrev_b32 v3, 4, v3\nv_lshl_add_u32 v3, v2, 7, v3")
            e("s_mul_i32 s32, s31, 10240\ns_add_u32 s32, s32, 16384\nv_add_u32 v%d, s32, v3\nv_xor_b32 v%d, 64, v%d" % (AW, AW + 1, AW))
            addr_regs = [AM + m for m in range(4)] + [AW, AW + 1]
        EX, ED, EB, EG, SC = 208, 218, 228, 238, 242
        e("s_lshl_b32 s32, s21, 7\ns_lshl_b32 s33, s30, 6\ns_add_u32 s32, s32, s33\ns_lshl_b32 s33, s24, 4\ns_add_u32 s32, s32, s33")
        e("v_add_u32 v14, s32, v2\ns_mul_i32 s33, s23, 160\ns_mul_i32 s34, s31, 80\ns_add_u32 s33, s33, s34\nv_lshl_add_u32 v15, v1, 2, s33")
        e("v_mul_u32_u24 v3, 640, v14\nv_add_u32 v3, v3, v15\nv_lshlrev_b32 v246, 2, v3\nv_lshlrev_b32 v3, 1, v3\nv_lshlrev_b32 v15, 1, v15")
        e("s_waitcnt lgkmcnt(0)")
        srd(k, 16, 40, SZ['out']); srd(k, 48, 42, SZ['dskip']); srd(k, 52, 44, SZ['b2'])
        for n in range(5):
            e("buffer_load_dwordx2 %s, v3, s[4:7], 0 offen offset:%d" % (vr(EX + 2 * n, 2), 32 * n))
            e("buffer_load_dwordx2 %s, v15, s[48:51], 0 offen offset:%d" % (vr(ED + 2 * n, 2), 32 * n))
            e("buffer_load_dwordx2 %s, v15, s[52:55], 0 offen offset:%d" % (vr(EB + 2 * n, 2), 32 * n))
        self.stamp(8)
        e("s_barrier")
        self.stamp(9)
        e("s_lshl_b32 s32, s21, 2\ns_add_u32 s32, s32, s24\ns_lshl_b32 s32, s32, 9\ns_add_u32 s32, s32, %d\ns_lshl_b32 s33, s30, 8\ns_add_u32 s32, s32, s33" % WS_G)
        e("v_lshlrev_b32 v14, 2, v2")
        for m in range(4): e("buffer_load_dword v%d, v14, s[12:15], s32 offen offset:%d sc1" % (EG + m, 64 * m))
        def reads(kk, which):
            M = F0M if which == 0 else F1M; W = F0W if which == 0 else F1W
            out = []
            for n in range(5):
                if typ == "ffn":
                    for h in range(2): out.append("ds_read_b64_tr_b16 %s, v%d offset:%d" % (vr(W + 4 * n + 2 * h, 2), AW + n, kk * 4096 + h * 2048))
                    if n < 4: out.append("ds_read_b128 %s, v%d offset:%d" % (vr(M + 4 * n), AM, n * 1024 + kk * 8192))
                else:
                    out.append("ds_read_b128 %s, v%d offset:%d" % (vr(W + 4 * n), AW + kk, n * 2048))
                    if n < 4:
                        for h in range(2): out.append("ds_read_b64_tr_b16 %s, v%d offset:%d" % (vr(M + 4 * n + 2 * h, 2), AM + n, kk * 8192 + h * 1024))
            return out
        def mfmas(which, first):
            M = F0M if which == 0 else F1M; W = F0W if which == 0 else F1W
            return ["v_mfma_f32_16x16x32_bf16 %s, %s, %s, %s" % (vr(acc(m, n)), vr(W + 4 * n), vr(M + 4 * m), "0" if first else vr(acc(m, n)))
                    for n in range(5) for m in range(4)]
        self.gemm_loop(pfx, reads, mfmas, addr_regs, STG2, "s25")
        self.stamp(10)
        e("s_waitcnt vmcnt(0)")
        for m in range(4):
            e(("v_sub_f32 v%d, 1.0, v%d" if typ == "ffn" else "v_mov_b32 v%d, v%d") % (SC + m, EG + m))
        e("s_lshl_b32 s32, s21, 2\ns_add_u32 s32, s32, s23\ns_mul_i32 s33, s32, %d\ns_add_u32 s33, s33, %d" % (16 * 20 * 1024, WS_XCH))
        e("s_mul_i32 s34, s20, 5120\ns_add_u32 s33, s33, s34\ns_mul_i32 s34, s24, %d\ns_add_u32 s40, s33, s34" % (20 * 1024))
        e("v_lshlrev_b32 v14, 4, v0")
        e("s_lshl_b32 s41, s32, 10\ns_lshl_b32 s34, s20, 6\ns_add_u32 s41, s41, s34\ns_add_u32 s41, s41, %d" % WS_XF)
        def epi(q, fl):
            L = self.u(pfx + "X")
            for m in range(4):
                if m == q: continue
                e("s_add_u32 s34, s40, %d\ns_add_u32 s35, s34, 4096" % (m * 4 * 20 * 1024))
                for n in range(5):
                    a = acc(m, n)
                    for r in range(4): e("v_mul_f32 v%d, v%d, v%d" % (a + r, a + r, SC + m))
                    if n < 4: e("buffer_store_dwordx4 %s, v14, s[12:15], s34 offen offset:%d %s" % (vr(a), n * 1024, fl))
                    else: e("buffer_store_dwordx4 %s, v14, s[12:15], s35 offen %s" % (vr(a), fl))
            gq = EG + q
            e("v_sub_f32 v15, 1.0, v%d" % gq)
            for n in range(5):
                a = acc(q, n)
                for r in range(4): e("v_mul_f32 v%d, v%d, v%d" % (a + r, a + r, SC + q))
                for h in range(2):
                    xs, ds, bs = EX + 2 * n + h, ED + 2 * n + h, EB + 2 * n + h
                    e("v_lshlrev_b32 v16, 16, v%d\nv_and_b32 v17, 0xffff0000, v%d\nv_lshlrev_b32 v18, 16, v%d\nv_and_b32 v19, 0xffff0000, v%d" % (xs, xs, ds, ds))
                    e("v_lshlrev_b32 v20, 16, v%d\nv_and_b32 v21, 0xffff0000, v%d\nv_mul_f32 v16, v16, v18\nv_mul_f32 v17, v17, v19" % (bs, bs))
                    e("v_fmac_f32 v%d, v%d, v16\nv_fmac_f32 v%d, v%d, v17\nv_fmac_f32 v%d, v15, v20\nv_fmac_f32 v%d, v15, v21" % (a + 2 * h, gq, a + 2 * h + 1, gq, a + 2 * h, a + 2 * h + 1))
            e("s_waitcnt vmcnt(0)")
            self.stamp(11)
            e("s_mov_b64 s[76:77], exec\ns_mov_b64 exec, 1")
            e("v_mov_b32 v16, s90\nv_mov_b32 v17, %d" % (q * 4))
            for m in range(4):
                if m == q: continue
                e("s_add_u32 s34, s41, %d\nbuffer_store_dword v16, v17, s[12:15], s34 offen %s" % (m * 256, fl))
            e("s_add_u32 s34, s41, %d\nv_mov_b32 v17, 0\ns_mov_b32 s36, 0" % (q * 256))
            self.label(L + "P")
            e("buffer_load_dwordx4 v[20:23], v17, s[12:15], s34 offen sc1\ns_waitcnt vmcnt(0)\ns_mov_b32 s35, 1")
            for m in range(4):
                if m == q: continue
                e("v_readfirstlane_b32 s37, v%d\ns_cmp_eq_u32 s37, s90\ns_cselect_b32 s35, s35, 0" % (20 + m))
            e("s_cmp_eq_u32 s35, 1\ns_cbranch_scc1 %sD" % L)
            e("s_add_u32 s36, s36, 1\ns_cmp_lt_u32 s36, 0x4000\ns_cbranch_scc0 %sD" % L)
            e("s_branch %sP" % L)
            self.label(L + "D")
            e("s_mov_b64 exec, s[76:77]")
            self.stamp(12)
            R = 16; idx = 0
            for src in range(4):
                if src == q: continue
                e("s_add_u32 s34, s33, %d\ns_add_u32 s35, s34, 4096" % ((q * 4 + src) * 20 * 1024))
                for n in range(5):
                    d = R + (n * 3 + idx) * 4
                    if n < 4: e("buffer_load_dwordx4 %s, v14, s[12:15], s34 offen offset:%d sc1" % (vr(d), n * 1024))
                    else: e("buffer_load_dwordx4 %s, v14, s[12:15], s35 offen sc1" % vr(d))
                idx += 1
            e("s_waitcnt vmcnt(0)")
            for n in range(5):
                a = acc(q, n)
                for i in range(3):
                    s_ = R + (n * 3 + i) * 4
                    e("v_pk_add_f32 %s, %s, %s\nv_pk_add_f32 %s, %s, %s" % (vr(a, 2), vr(a, 2), vr(s_, 2), vr(a + 2, 2), vr(a + 2, 2), vr(s_ + 2, 2)))
                e("buffer_store_dwordx4 %s, v246, s[16:19], 0 offen offset:%d" % (vr(a), 64 * n))
        q0 = 2 if typ == "ffn" else 0
        e("s_nop 7")
        e("s_sub_u32 s32, s24, %d\ns_lshl_b32 s34, s91, 1\ns_or_b32 s32, s32, s34" % q0)
        e("s_cmp_eq_u32 s32, 2\ns_cbranch_scc1 %s_F0\ns_cmp_eq_u32 s32, 3\ns_cbranch_scc1 %s_F1\ns_cmp_eq_u32 s32, 0\ns_cbranch_scc1 %s_S0" % (pfx, pfx, pfx))
        epi(q0 + 1, "sc1"); e("s_branch %s_END" % pfx)
        self.label(pfx + "_S0"); epi(q0, "sc1"); e("s_branch %s_END" % pfx)
        self.label(pfx + "_F1"); epi(q0 + 1, ""); e("s_branch %s_END" % pfx)
        self.label(pfx + "_F0"); epi(q0, "")
        self.label(pfx + "_END")
        if self.stamps:
            e("s_waitcnt vmcnt(0)")
            self.stamp(13)

    def p2_loader(self, typ, pfx):
        k = self.k; e = self.e
        self.p2_setup_scalars(typ)
        if typ == "ffn":
            e("s_load_dwordx2 s[60:61], s[0:1], %d" % KA['w2'])
        else:
            e("s_load_dwordx2 s[60:61], s[0:1], %d\ns_load_dwordx2 s[62:63], s[0:1], %d" % (KA['cre'], KA['cim']))
        e("v_lshrrev_b32 v1, 3, v0\nv_and_b32 v4, 7, v0\nv_lshrrev_b32 v5, 4, v0\nv_lshlrev_b32 v2, 4, v0\nv_mul_u32_u24 v7, 1280, v1")
        e("s_lshl_b32 s42, s30, 10\ns_mov_b32 s43, 0")
        if typ == "ffn":
            e("v_and_b32 v6, 3, v5\nv_lshlrev_b32 v6, 1, v6\nv_xor_b32 v6, v4, v6\nv_lshlrev_b32 v6, 4, v6\nv_add_u32 v3, v6, v7")
            e("s_cmp_eq_u32 s24, 2\ns_cselect_b32 s32, 0, 14")
            e("s_mul_i32 s40, s21, 27\ns_add_u32 s40, s40, s32\ns_lshl_b32 s40, s40, 14\ns_lshl_b32 s33, s30, 10\ns_add_u32 s40, s40, s33")
            e("s_lshl_b32 s41, s32, 6\ns_lshl_b32 s33, s30, 3\ns_add_u32 s41, s41, s33\ns_mul_i32 s41, s41, 1280")
            e("s_mul_i32 s33, s23, 320\ns_and_b32 s33, s33, 0xffffff80\ns_add_u32 s41, s41, s33")
            e("s_waitcnt lgkmcnt(0)")
            srd(k, 8, 60, SZ['w2'])
            NW = 6
            def wdma(idx):
                G, u = idx // 2, idx % 2
                e("s_add_u32 m0, s42, %d\ns_add_u32 s44, s41, %d" % (16384 + G * 8192 + u * 4096, u * 32 * 1280 + G * 128))
                e("buffer_load_dwordx4 v3, s[8:11], s44 offen lds")
            def next_stage():
                e("s_add_u32 s40, s40, 16384\ns_add_u32 s41, s41, %d" % (64 * 1280))
                self.lds_next(42, 43, STG2)
        else:
            e("s_and_b32 s31, s30, 1\ns_lshl_b32 s32, s31, 2\nv_add_u32 v6, s32, v5\nv_and_b32 v6, 7, v6\nv_xor_b32 v6, v4, v6\nv_lshlrev_b32 v6, 4, v6\nv_add_u32 v3, v6, v7")
            e("s_mul_i32 s40, s21, 20\ns_mul_i32 s33, s24, 10\ns_add_u32 s40, s40, s33\ns_lshl_b32 s40, s40, 14\ns_lshl_b32 s33, s30, 10\ns_add_u32 s40, s40, s33\ns_add_u32 s40, s40, %d" % WS_MIDS)
            e("s_mul_i32 s41, s23, 160\ns_lshl_b32 s33, s30, 3\ns_add_u32 s41, s41, s33\ns_mul_i32 s41, s41, 1280\ns_mul_i32 s33, s24, 640\ns_add_u32 s41, s41, s33")
            e("s_mov_b32 s46, 0\ns_waitcnt lgkmcnt(0)")
            srd(k, 8, 60, SZ['cre'])
            NW = 5
            def wdma(idx):
                e("s_add_u32 m0, s42, %d\ns_add_u32 s44, s41, %d" % (16384 + idx * 4096, idx * 32 * 1280))
                e("buffer_load_dwordx4 v3, s[8:11], s44 offen lds")
            def next_stage():
                e("s_add_u32 s40, s40, 16384\ns_xor_b32 s46, s46, 1\ns_cmp_eq_u32 s46, 1")
                e("s_cselect_b32 s8, s62, s60\ns_cselect_b32 s32, s63, s61\ns_cselect_b32 s45, 0, 128\ns_and_b32 s9, s32, 0xffff\ns_add_u32 s41, s41, s45")
                self.lds_next(42, 43, STG2)
        def mdma(u):
            e("s_add_u32 m0, s42, %d\ns_add_u32 s44, s40, %d" % (u * 4096, u * 4096))
            e("buffer_load_dwordx4 v2, s[12:15], s44 offen sc1 lds")
        N = NW + 4
        def dma(i):
            if i < NW: wdma(i)
            else: mdma(i - NW)
        LA = min(self.LA, N)
        for i in range(NW): wdma(i)
        e("s_waitcnt vmcnt(0)")
        self.stamp(8)
        e("s_barrier")
        L = self.u(pfx + "PF")
        e("s_lshl_b32 s32, s21, 2\ns_add_u32 s32, s32, s24\ns_lshl_b32 s32, s32, 6\ns_add_u32 s32, s32, %d" % WS_PF)
        e("s_mov_b64 s[76:77], exec\ns_mov_b64 exec, 1")
        e("v_mov_b32 v16, s90\ns_lshl_b32 s33, s23, 2\nv_mov_b32 v17, s33")
        e("s_cmp_eq_u32 s30, 0\ns_cbranch_scc0 %s_NF" % L)
        e("s_cmp_eq_u32 s91, 1\ns_cbranch_scc1 %s_FF" % L)
        e("buffer_store_dword v16, v17, s[12:15], s32 offen sc1\ns_branch %s_NF" % L)
        self.label(L + "_FF")
        e("buffer_store_dword v16, v17, s[12:15], s32 offen")
        self.label(L + "_NF")
        e("v_mov_b32 v17, 0\ns_mov_b32 s36, 0")
        self.label(L + "_P")
        e("buffer_load_dwordx4 v[20:23], v17, s[12:15], s32 offen sc1\ns_waitcnt vmcnt(0)\ns_mov_b32 s35, 1")
        for m in range(4): e("v_readfirstlane_b32 s37, v%d\ns_cmp_eq_u32 s37, s90\ns_cselect_b32 s35, s35, 0" % (20 + m))
        e("s_cmp_eq_u32 s35, 1\ns_cbranch_scc1 %s_D" % L)
        e("s_add_u32 s36, s36, 1\ns_cmp_lt_u32 s36, 0x4000\ns_cbranch_scc0 %s_D" % L)
        e("s_branch %s_P" % L)
        self.label(L + "_D")
        e("s_mov_b64 exec, s[76:77]")
        self.stamp(9)
        for u in range(4): mdma(u)
        next_stage()
        for i in range(LA): dma(i)
        e("s_waitcnt vmcnt(%d)\ns_barrier" % LA)
        self.stamp(10)
        e("s_sub_u32 s49, s25, 2")
        self.label(pfx + "_LL")
        for i in range(LA, N): dma(i)
        next_stage()
        for i in range(LA): dma(i)
        e("s_waitcnt vmcnt(%d)\ns_barrier" % LA)
        e("s_sub_u32 s49, s49, 1\ns_cmp_lg_u32 s49, 0\ns_cbranch_scc1 %s_LL" % pfx)
        for i in range(LA, N): dma(i)
        e("s_waitcnt vmcnt(0)\ns_barrier")
        self.stamp(11)

    def build(self):
        k = self.k; e = self.e
        hdr = open("cdna_kernels/%s.s.ref" % NAME).read().split("; Override launch geometry")[0]
        out = hdr + "; @launch grid=(256,1,1) block=(512,1,1) lds=%d\n" % LDS_TOTAL
        out += '.amdgcn_target "amdgcn-amd-amdhsa--gfx950"\n.text\n.globl %s\n.p2align 8\n.type %s,@function\n' % (KNAME, KNAME)
        self.label(KNAME)
        e("s_cmp_ge_u32 s2, 256\ns_cbranch_scc1 DONE")
        loads = [("x", 40), ("w1", 42), ("ws", 44), ("b1", 46), ("dbg", 70), ("bre", 60), ("bim", 62), ("lre", 64), ("lim", 66), ("logdt", 68), ("gw", 84)]
        for n, s in loads: e("s_load_dwordx2 s[%d:%d], s[0:1], %d" % (s, s + 1, KA[n]))
        e("s_and_b32 s25, s2, 7\ns_lshr_b32 s26, s2, 3\ns_bfe_u32 s27, s26, 0x10003\ns_lshl_b32 s21, s25, 1\ns_add_u32 s21, s21, s27")
        e("s_lshr_b32 s27, s26, 4\ns_lshl_b32 s27, s27, 3\ns_and_b32 s22, s26, 7\ns_add_u32 s22, s22, s27")
        e("v_lshrrev_b32 v1, 6, v0\ns_nop 0\nv_readfirstlane_b32 s20, v1\nv_and_b32 v0, 63, v0")
        if self.stamps:
            e("v_mov_b32 v255, 0")
            e("s_memrealtime s[92:93]\ns_waitcnt lgkmcnt(0)\nv_writelane_b32 v255, s92, 29")
        e("s_waitcnt lgkmcnt(0)")
        srd(k, 4, 40, SZ['x']); srd(k, 12, 44, WS_SIZE); srd(k, 80, 84, SZ['gw'])
        e("s_cmp_lt_u32 s22, 8\ns_cbranch_scc1 R_SSM")
        srd(k, 8, 42, SZ['w1'])
        e("s_sub_u32 s23, s22, 8\ns_mul_i32 s24, s23, 224\ns_cmp_eq_u32 s23, 7\ns_cselect_b32 s24, 1504, s24")
        e("s_lshl_b32 s27, s24, 1\ns_and_b32 s26, s27, 0xffffff80\ns_sub_u32 s28, s27, s26")
        e("s_cmp_ge_u32 s20, 4\ns_cbranch_scc0 R_FFN_C")
        self.ffn_loader()
        self.p2_loader("ffn", "P2F")
        e("s_branch FIN")
        self.label("R_SSM")
        srd(k, 8, 60, SZ['bre'])
        e("s_cmp_ge_u32 s20, 4\ns_cbranch_scc0 R_SSM_C")
        srd(k, 56, 62, SZ['bim']); srd(k, 16, 64, SZ['lre']); srd(k, 48, 66, SZ['lim']); srd(k, 52, 68, SZ['logdt'])
        self.ssm_loader()
        self.p2_loader("ssm", "P2S")
        e("s_branch FIN")
        self.label("R_SSM_C")
        self.ssm_compute()
        self.p2_compute("ssm", "P2SC")
        e("s_branch FIN")
        self.label("R_FFN_C")
        srd(k, 16, 46, SZ['b1'])
        self.ffn_compute()
        self.p2_compute("ffn", "P2FC")
        self.label("FIN")
        self.stamp_dump()
        self.label("DONE")
        e("s_endpgm")
        out += k.text()
        out += '.section .rodata,"a"\n' + kernel_desc(KNAME, sgpr=96)
        return out

if __name__ == "__main__":
    import argparse
    ap = argparse.ArgumentParser()
    ap.add_argument("--stamps", type=int, default=0); ap.add_argument("--la", type=int, default=8)
    ap.add_argument("--touch", type=int, default=1); ap.add_argument("--prio", type=int, default=1); ap.add_argument("--slow", type=int, default=0)
    a = ap.parse_args()
    print(Gen(bool(a.stamps), a.la, bool(a.touch), bool(a.prio), bool(a.slow)).build())
```

```python
import sys
from common import K, vr, sr, KA, SZ, srd, kernel_desc
NAME = "gated_mix__ssm_conv_s5__dense_activation_squared_relu__prompt"
KNAME = NAME + "_kernel"

WS_MIDF = 0
WS_MIDS = 8 << 20
WS_G    = 14 << 20
WS_E    = 15 << 20
WS_EPOCH = (15 << 20) + (512 << 10)
WS_XT   = (15 << 20) + (576 << 10)
WS_PF   = (15 << 20) + (608 << 10)
WS_XF   = (15 << 20) + (640 << 10)
WS_XCH  = 16 << 20
WS_SIZE = 64 << 20
STG_F = 49152; STG_S = 36864; STG2 = 40960
ET_OFF = 122880; CT_OFF = ET_OFF + 5120; KT_OFF = CT_OFF + 5120
GW_OFF = 155648
SYNC_OFF = GW_OFF + 2048
LDS_TOTAL = SYNC_OFF + 64
DPP = "quad_perm:[1,0,3,2] row_mask:0xf bank_mask:0xf"
NST = 10

class Gen:
    def __init__(self, stamps=False, LA=8, touch=True, prio=True, force_slow=False, span=False):
        self.span = span
        self.k = K(); self.stamps = stamps; self.LA = LA; self.touch = touch; self.prio = prio; self.force_slow = force_slow
        self.uid = 0
    def e(self, s): self.k.e(s)
    def label(self, s): self.k.label(s)
    def u(self, base):
        self.uid += 1
        return "%s_%d" % (base, self.uid)
    def stamp(self, i):
        if self.stamps:
            self.e("s_memrealtime s[92:93]\ns_waitcnt lgkmcnt(0)\nv_writelane_b32 v255, s92, %d" % i)
    def stamp_dump(self):
        if not self.stamps: return
        self.e("s_load_dwordx2 s[94:95], s[0:1], %d\ns_waitcnt lgkmcnt(0)" % KA['dbg'])
        self.e("s_lshl_b32 s33, s2, 3\ns_add_u32 s33, s33, s20\ns_lshl_b32 s33, s33, 7\ns_add_u32 s33, s33, 4096\ns_add_u32 s94, s94, s33\ns_addc_u32 s95, s95, 0")
        self.e("v_writelane_b32 v255, s22, 30\nv_writelane_b32 v255, s21, 31")
        self.e("v_lshlrev_b32 v254, 2, v0\nv_cmp_gt_u32 vcc, 32, v0\ns_and_saveexec_b64 s[76:77], vcc")
        self.e("global_store_dword v254, v255, s[94:95]")
        self.e("s_mov_b64 exec, s[76:77]")

    def gemm_loop(self, pfx, reads, mfmas, addr_regs, stg, nst_expr, last_fill=None, first_c=True):
        k = self.k
        self.e("s_mov_b32 s36, %d\ns_mov_b32 s39, %d\ns_mov_b32 s29, %d\ns_mov_b32 s37, 0" % (stg, stg, (-2 * stg) & 0xffffffff))
        self.e("\n".join(reads(0, 0)))
        mid = ["v_add_u32 v%d, s36, v%d" % (r, r) for r in addr_regs]
        dupd = ["s_add_u32 s37, s37, 1", "s_cmp_eq_u32 s37, 2", "s_cselect_b32 s36, s29, s39", "s_cmp_eq_u32 s37, 3", "s_cselect_b32 s37, 0, s37"]
        def iteration(first=False, last=False):
            self.e("s_waitcnt lgkmcnt(0)")
            k.interleave(mfmas(0, first), reads(1, 1) + ([] if last else mid))
            self.e("s_waitcnt lgkmcnt(0)")
            if not last:
                self.e("s_barrier")
                k.interleave(mfmas(1, False), reads(0, 0) + dupd)
            else:
                k.interleave(mfmas(1, False), last_fill or [])
        iteration(first=True)
        if isinstance(nst_expr, int):
            self.e("s_mov_b32 s38, %d" % (nst_expr - 2))
        else:
            self.e("s_sub_u32 s38, %s, 2" % nst_expr)
        self.label(pfx + "_LOOP")
        iteration()
        self.e("s_sub_u32 s38, s38, 1\ns_cmp_lg_u32 s38, 0\ns_cbranch_scc1 %s_LOOP" % pfx)
        iteration(last=True)

    def loader_seq(self, nst, N, dma, next_stage, after=None, stamp_base=None):
        LA = min(self.LA, N)
        self.ndma_iter = N
        for s in range(nst):
            for i in range(0 if s == 0 else LA, N): dma(i)
            next_stage()
            if s + 1 < nst:
                for i in range(LA): dma(i)
            if s >= 1 and after: after(s - 1)
            self.e("s_waitcnt vmcnt(%d)" % (LA if s + 1 < nst else 0))
            self.e("s_barrier")
            if stamp_base is not None and s in (0, 3, 9): self.stamp(stamp_base + (0, 0, 0, 1, 0, 0, 0, 0, 0, 2)[s])
        if after: after(nst - 1)

    def lds_next(self, sbase, sidx, stg):
        self.e("s_add_u32 s%d, s%d, %d\ns_add_u32 s%d, s%d, 1\ns_cmp_eq_u32 s%d, 3" % (sbase, sbase, stg, sidx, sidx, sidx))
        self.e("s_cselect_b32 s45, %d, 0\ns_cselect_b32 s%d, 0, s%d\ns_sub_u32 s%d, s%d, s45" % (3 * stg, sidx, sidx, sbase, sbase))

    def service_init(self):
        self.e("s_getreg_b32 s88, hwreg(HW_REG_XCC_ID, 0, 4)")
        self.e("s_mov_b32 s91, 0\ns_mov_b32 s90, 0\ns_mov_b32 s89, 0")
        self.e("v_mov_b32 v221, 0")
        self.e("s_lshl_b32 s87, s21, 7\ns_add_u32 s87, s87, %d" % WS_XT)
        self.e("v_and_b32 v222, 15, v0\nv_lshlrev_b32 v222, 3, v222")
        self.e("s_lshl_b32 s32, s22, 3\nv_mov_b32 v223, s32")
    def service_step(self, blocking=False):
        L = self.u("SV")
        if blocking: self.label(L + "_TOP");
        self.e("s_cmp_eq_u32 s91, 2\ns_cbranch_scc1 %s_END" % L)
        self.e("s_waitcnt vmcnt(%d)" % (0 if blocking else self.ndma_iter))
        self.e("s_cmp_eq_u32 s91, 1\ns_cbranch_scc1 %s_S1" % L)
        self.e("s_cmp_eq_u32 s89, 0\ns_cbranch_scc1 %s_LD0" % L)
        self.e("v_readfirstlane_b32 s90, v220")
        self.e("s_cmp_eq_u32 s90, 0\ns_cbranch_scc1 %s_LD0" % L)
        self.e("v_mov_b32 v224, s90\nv_mov_b32 v225, s88")
        self.e("s_mov_b64 s[76:77], exec\ns_mov_b64 exec, 1")
        self.e("buffer_store_dwordx2 v[224:225], v223, s[12:15], s87 offen sc1")
        self.e("s_mov_b64 exec, s[76:77]")
        self.e("s_mov_b32 s91, 1\ns_branch %s_LD1" % L)
        self.label(L + "_LD0")
        self.e("global_load_dword v220, v221, s[70:71] sc1\ns_mov_b32 s89, 1\ns_branch %s_END" % L)
        self.label(L + "_S1")
        self.e("v_cmp_eq_u32 vcc, s90, v226\ns_nop 1\ns_and_b32 s32, vcc_lo, 0xffff\ns_cmp_eq_u32 s32, 0xffff\ns_cbranch_scc0 %s_LD1" % L)
        self.e("v_cmp_eq_u32 vcc, s88, v227\ns_nop 1\ns_and_b32 s32, vcc_lo, 0xffff\ns_cmp_eq_u32 s32, 0xffff\ns_cselect_b32 s86, 1, 0")
        if self.force_slow: self.e("s_mov_b32 s86, 0")
        self.e("v_mov_b32 v224, s90\nv_mov_b32 v225, s86\nv_mov_b32 v228, %d" % SYNC_OFF)
        self.e("ds_write_b64 v228, v[224:225]\ns_waitcnt lgkmcnt(0)")
        self.e("s_mov_b32 s91, 2\ns_branch %s_END" % L)
        self.label(L + "_LD1")
        self.e("buffer_load_dwordx2 v[226:227], v222, s[12:15], s87 offen sc1")
        self.label(L + "_END")
        if blocking:
            self.e("s_cmp_eq_u32 s91, 2\ns_cbranch_scc1 %s_FIN" % L)
            self.e("s_add_u32 s85, s85, 1\ns_cmp_lt_u32 s85, 0x4000\ns_cbranch_scc0 %s_FIN" % L)
            self.e("s_branch %s_TOP" % L)
            self.label(L + "_FIN")
    def service_hook(self, s):
        L = self.u("SVH")
        self.e("s_cmp_eq_u32 s20, 7\ns_cbranch_scc0 %s" % L)
        if s == "final":
            self.e("s_mov_b32 s85, 0")
            self.service_step(blocking=True)
        else:
            self.service_step()
        self.label(L)
    def read_sync(self, vtmp):
        self.e("v_mov_b32 v%d, %d\nds_read_b64 v[%d:%d], v%d\ns_waitcnt lgkmcnt(0)" % (vtmp, SYNC_OFF, vtmp + 2, vtmp + 3, vtmp))
        self.e("v_readfirstlane_b32 s90, v%d\nv_readfirstlane_b32 s91, v%d" % (vtmp + 2, vtmp + 3))

    def gate_prep(self, stg, fxor_reg):
        L = self.u("GP")
        self.e("s_and_b32 s32, s22, 3\ns_lshl_b32 s32, s32, 2\ns_add_u32 s32, s32, s30\ns_lshl_b32 s33, s32, 10")
        self.e("v_lshlrev_b32 v207, 4, v0\nv_add_u32 v207, s33, v207")
        self.e("v_add_u32 v212, %d, v207\nv_add_u32 v213, %d, v207" % (stg, 2 * stg))
        self.e("v_and_b32 v206, 7, v0\nv_xor_b32 v206, v206, v%d\nv_lshlrev_b32 v206, 4, v206\nv_add_u32 v206, %d, v206" % (fxor_reg, GW_OFF))
        self.e("v_mov_b32 v204, 0\nv_mov_b32 v218, 0")
        self.e("s_lshr_b32 s33, s22, 2\ns_and_b32 s33, s33, 3")
        self.e("s_lshl_b32 s34, s21, 2\ns_add_u32 s34, s34, s33\ns_lshl_b32 s34, s34, 7\ns_lshl_b32 s32, s32, 3\ns_add_u32 s34, s34, s32\ns_lshl_b32 s34, s34, 2\ns_add_u32 s34, s34, %d" % WS_G)
        self.e("v_lshrrev_b32 v214, 3, v0\nv_lshlrev_b32 v214, 2, v214\nv_add_u32 v214, s34, v214")
    def gate_dma(self):
        L = self.u("GD")
        self.e("s_cmp_eq_u32 s30, 3\ns_cbranch_scc0 %s" % L)
        self.e("v_lshlrev_b32 v205, 4, v0")
        self.e("s_mov_b32 m0, %d\ns_nop 0" % GW_OFF)
        self.e("buffer_load_dwordx4 v205, s[80:83], 0 offen lds")
        self.e("s_mov_b32 m0, %d\ns_movk_i32 s32, 1024" % (GW_OFF + 1024))
        self.e("buffer_load_dwordx4 v205, s[80:83], s32 offen lds")
        self.label(L)
    def gate_step(self, s):
        a = [207, 212, 213][s % 3]
        self.e("ds_read_b128 v[200:203], v%d\nds_read_b128 v[208:211], v206 offset:%d\ns_waitcnt lgkmcnt(0)" % (a, 128 * s))
        for i in range(4):
            self.e("v_lshlrev_b32 v216, 16, v%d\nv_lshlrev_b32 v217, 16, v%d\nv_and_b32 v219, 0xffff0000, v%d\nv_and_b32 v229, 0xffff0000, v%d" % (200 + i, 208 + i, 200 + i, 208 + i))
            self.e("v_fmac_f32 v204, v216, v217\nv_fmac_f32 v218, v219, v229")
    def gate_finish(self):
        self.e("v_add_f32 v204, v204, v218\ns_nop 1")
        self.e("v_add_f32_dpp v204, v204, v204 quad_perm:[1,0,3,2] row_mask:0xf bank_mask:0xf\ns_nop 1")
        self.e("v_add_f32_dpp v204, v204, v204 quad_perm:[2,3,0,1] row_mask:0xf bank_mask:0xf\ns_nop 1")
        self.e("v_add_f32_dpp v204, v204, v204 row_half_mirror row_mask:0xf bank_mask:0xf")
        self.e("v_mul_f32 v204, 0xbfb8aa3b, v204\nv_exp_f32 v204, v204\ns_nop 0\nv_add_f32 v204, 1.0, v204\nv_rcp_f32 v204, v204")
    def gate_store(self):
        L = self.u("GS")
        self.e("v_and_b32 v205, 7, v0\nv_cmp_eq_u32 vcc, 0, v205\ns_and_saveexec_b64 s[76:77], vcc")
        self.e("s_cmp_eq_u32 s91, 1\ns_cbranch_scc1 %s_F" % L)
        self.e("buffer_store_dword v204, v214, s[12:15], 0 offen sc1\ns_branch %s_E" % L)
        self.label(L + "_F")
        self.e("buffer_store_dword v204, v214, s[12:15], 0 offen")
        self.label(L + "_E")
        self.e("s_mov_b64 exec, s[76:77]")

    def touch_p1(self):
        if not self.touch: return
        L = self.u("T")
        self.e("v_lshlrev_b32 v240, 7, v0")
        self.e("s_cmp_eq_u32 s20, 0\ns_cbranch_scc0 %s_1" % L)
        self.e("s_mul_i32 s33, s2, 10240")
        self.e("buffer_load_dword v248, v240, s[4:7], s33 offen")
        self.e("s_add_u32 s33, s33, 8192\nv_cmp_gt_u32 vcc, 16, v0\ns_and_saveexec_b64 s[76:77], vcc")
        self.e("buffer_load_dword v249, v240, s[4:7], s33 offen\ns_mov_b64 exec, s[76:77]\ns_branch %s_E" % L)
        self.label(L + "_1")
        self.e("s_cmp_eq_u32 s20, 1\ns_cbranch_scc0 %s_2" % L)
        srd(self.k, 48, 42, SZ['w1'])
        self.e("s_mul_i32 s33, s2, 8640")
        self.e("buffer_load_dword v248, v240, s[48:51], s33 offen")
        self.e("s_add_u32 s33, s33, 8192\nv_cmp_gt_u32 vcc, 4, v0\ns_and_saveexec_b64 s[76:77], vcc")
        self.e("buffer_load_dword v249, v240, s[48:51], s33 offen\ns_mov_b64 exec, s[76:77]\ns_branch %s_E" % L)
        self.label(L + "_2")
        self.e("s_cmp_eq_u32 s20, 2\ns_cbranch_scc0 %s_E" % L)
        self.e("s_mul_i32 s33, s2, 3200\nv_cmp_gt_u32 vcc, 25, v0\ns_and_saveexec_b64 s[76:77], vcc")
        srd(self.k, 48, 60, SZ['bre'])
        self.e("buffer_load_dword v248, v240, s[48:51], s33 offen")
        srd(self.k, 52, 62, SZ['bim'])
        self.e("buffer_load_dword v249, v240, s[52:55], s33 offen\ns_mov_b64 exec, s[76:77]")
        self.label(L + "_E")
    def touch_p2(self):
        if not self.touch: return
        L = self.u("T2")
        self.e("s_cmp_eq_u32 s20, 3\ns_cbranch_scc0 %s" % L)
        self.e("s_load_dwordx2 s[48:49], s[0:1], %d\ns_load_dwordx2 s[50:51], s[0:1], %d\ns_load_dwordx2 s[52:53], s[0:1], %d\ns_waitcnt lgkmcnt(0)" % (KA['w2'], KA['cre'], KA['cim']))
        self.e("v_lshlrev_b32 v240, 7, v0")
        srd(self.k, 56, 48, SZ['w2'])
        self.e("s_mul_i32 s33, s2, 8640")
        self.e("buffer_load_dword v248, v240, s[56:59], s33 offen")
        self.e("s_add_u32 s33, s33, 8192\nv_cmp_gt_u32 vcc, 4, v0\ns_and_saveexec_b64 s[76:77], vcc")
        self.e("buffer_load_dword v249, v240, s[56:59], s33 offen\ns_mov_b64 exec, s[76:77]")
        self.e("s_mul_i32 s33, s2, 3200\nv_cmp_gt_u32 vcc, 25, v0\ns_and_saveexec_b64 s[76:77], vcc")
        srd(self.k, 56, 50, SZ['cre'])
        self.e("buffer_load_dword v250, v240, s[56:59], s33 offen")
        srd(self.k, 56, 52, SZ['cim'])
        self.e("buffer_load_dword v251, v240, s[56:59], s33 offen\ns_mov_b64 exec, s[76:77]")
        self.label(L)

    def ffn_compute(self):
        k = self.k; e = self.e
        ACC, BIAS, F0X, F0W, F1X, F1W = 132, 104, 16, 32, 60, 76
        AX0, AX1, AW = 4, 5, 6
        def acc(m, n): return ACC + (m * 7 + n) * 4
        e("s_lshr_b32 s30, s20, 1\ns_and_b32 s31, s20, 1")
        e("v_lshrrev_b32 v1, 4, v0\nv_and_b32 v2, 15, v0")
        e("s_mul_i32 s33, s31, 112\ns_add_u32 s33, s33, s24\ns_lshl_b32 s33, s33, 1")
        e("v_lshlrev_b32 v14, 3, v1")
        for n in range(7):
            e("buffer_load_dwordx2 %s, v14, s[16:19], s33 offen offset:%d" % (vr(F1X + 2 * n, 2), 32 * n))
        self.touch_p1(); self.touch_p2()
        e("s_lshl_b32 s32, s30, 13")
        e("v_lshrrev_b32 v3, 1, v2\nv_xor_b32 v3, v1, v3\nv_lshlrev_b32 v3, 4, v3\nv_lshl_add_u32 v3, v2, 7, v3")
        e("v_add_u32 v%d, s32, v3\nv_xor_b32 v%d, 64, v%d" % (AX0, AX1, AX0))
        e("v_bfe_u32 v13, v0, 2, 2\nv_and_b32 v14, 3, v0\nv_lshl_add_u32 v15, v1, 3, v13\nv_lshlrev_b32 v15, 7, v15\nv_lshl_add_u32 v15, v14, 3, v15")
        e("v_lshrrev_b32 v13, 1, v13\nv_and_b32 v14, 1, v1\nv_lshl_or_b32 v13, v14, 1, v13")
        e("s_mul_i32 s32, s31, 224\ns_add_u32 s32, s32, s28")
        for n in range(7):
            e("s_add_u32 s33, s32, %d" % (32 * n))
            e("s_lshr_b32 s34, s33, 7\ns_lshl_b32 s34, s34, 13\ns_add_u32 s34, s34, 16384\ns_bfe_u32 s35, s33, 0x20005")
            e("v_xor_b32 v14, s35, v13\nv_lshl_add_u32 v14, v14, 5, v15\nv_add_u32 v%d, s34, v14" % (AW + n))
        e("s_lshl_b32 s32, s30, 12\nv_lshlrev_b32 v13, 4, v0\nv_add_u32 v13, s32, v13")
        nt = 0
        if self.touch:
            e("s_cmp_eq_u32 s20, 3\ns_cbranch_scc1 FFN_BW4\ns_waitcnt vmcnt(2)\ns_branch FFN_BWE")
            self.label("FFN_BW4"); e("s_waitcnt vmcnt(4)"); self.label("FFN_BWE")
        else:
            e("s_waitcnt vmcnt(0)")
        for n in range(7):
            for h in range(2):
                src = F1X + 2 * n + h
                e("v_lshlrev_b32 v%d, 16, v%d\nv_and_b32 v%d, 0xffff0000, v%d" % (BIAS + 4 * n + 2 * h, src, BIAS + 4 * n + 2 * h + 1, src))
        self.stamp(1)
        e("s_barrier")
        self.stamp(2)
        def reads(kk, which):
            X = F0X if which == 0 else F1X; W = F0W if which == 0 else F1W; ax = AX0 if kk == 0 else AX1
            out = []
            for n in range(7):
                for h in range(2):
                    out.append("ds_read_b64_tr_b16 %s, v%d offset:%d" % (vr(W + 4 * n + 2 * h, 2), AW + n, kk * 4096 + h * 512))
                if n < 4: out.append("ds_read_b128 %s, v%d offset:%d" % (vr(X + 4 * n), ax, n * 2048))
            return out
        def mfmas(which, first):
            X = F0X if which == 0 else F1X; W = F0W if which == 0 else F1W
            return ["v_mfma_f32_16x16x32_bf16 %s, %s, %s, %s" % (vr(acc(m, n)), vr(W + 4 * n), vr(X + 4 * m), vr(BIAS + 4 * n) if first else vr(acc(m, n)))
                    for n in range(7) for m in range(4)]
        self.gemm_loop("FFN", reads, mfmas, [AX0, AX1] + [AW + n for n in range(7)], STG_F, NST)
        self.stamp(3)
        e("s_barrier")
        self.read_sync(244)
        e("s_mul_i32 s33, s21, 54\ns_lshr_b32 s34, s24, 5\ns_add_u32 s33, s33, s34\ns_lshl_b32 s33, s33, 13")
        T = 16
        def relu2_pack(m, n, dst):
            a = acc(m, n)
            for r in range(4): e("v_max_f32 v%d, 0, v%d" % (a + r, a + r))
            e("v_pk_mul_f32 %s, %s, %s\nv_pk_mul_f32 %s, %s, %s" % (vr(a, 2), vr(a, 2), vr(a, 2), vr(a + 2, 2), vr(a + 2, 2), vr(a + 2, 2)))
            e("v_cvt_pk_bf16_f32 v%d, v%d, v%d\nv_cvt_pk_bf16_f32 v%d, v%d, v%d" % (dst, a, a + 1, dst + 1, a + 2, a + 3))
        def epi(wf, fl):
            tc = [0]
            def tmp():
                t = T + (tc[0] % 8) * 4; tc[0] += 1
                return t
            if wf == 0: pairs = [(0, 1, 0), (2, 3, 1), (4, 5, 2)]; single = (6, 3, 0)
            else: pairs = [(1, 2, 4), (3, 4, 5), (5, 6, 6)]; single = (0, 3, 8)
            for (n0, n1, ks) in pairs:
                e("s_add_u32 s34, s33, %d" % (ks * 8192))
                for m in range(4):
                    t = tmp(); relu2_pack(m, n0, t); relu2_pack(m, n1, t + 2)
                    e("buffer_store_dwordx4 %s, v13, s[12:15], s34 offen offset:%d %s" % (vr(t), m * 1024, fl))
            n, ks, o = single
            e("s_add_u32 s34, s33, %d" % (ks * 8192))
            for m in range(4):
                t = tmp(); relu2_pack(m, n, t)
                e("buffer_store_dwordx2 %s, v13, s[12:15], s34 offen offset:%d %s" % (vr(t, 2), m * 1024 + o, fl))
        e("s_lshl_b32 s32, s91, 1\ns_or_b32 s32, s32, s31")
        e("s_cmp_eq_u32 s32, 2\ns_cbranch_scc1 FE_F0\ns_cmp_eq_u32 s32, 3\ns_cbranch_scc1 FE_F1\ns_cmp_eq_u32 s32, 0\ns_cbranch_scc1 FE_S0")
        epi(1, "sc1"); e("s_branch FE_END")
        self.label("FE_S0"); epi(0, "sc1"); e("s_branch FE_END")
        self.label("FE_F1"); epi(1, ""); e("s_branch FE_END")
        self.label("FE_F0"); epi(0, "")
        self.label("FE_END")
        self.stamp(4)
        e("s_waitcnt vmcnt(0)")
        self.stamp(5)
        e("s_barrier")

    def x_loader_common(self):
        e = self.e
        e("s_sub_u32 s30, s20, 4")
        if self.prio: e("s_setprio 2")
        e("v_lshrrev_b32 v1, 3, v0\nv_and_b32 v4, 7, v0\nv_lshrrev_b32 v5, 4, v0\nv_mul_u32_u24 v7, 1280, v1")
        e("s_lshl_b32 s32, s21, 7\ns_lshl_b32 s33, s30, 3\ns_add_u32 s32, s32, s33\ns_mul_i32 s40, s32, 1280")

    def ffn_loader(self):
        e = self.e
        self.x_loader_common()
        e("s_and_b32 s31, s30, 1")
        e("s_lshl_b32 s32, s31, 2\nv_add_u32 v215, s32, v5\nv_and_b32 v215, 7, v215")
        e("v_xor_b32 v6, v4, v215\nv_lshlrev_b32 v6, 4, v6\nv_add_u32 v2, v6, v7")
        e("v_and_b32 v6, 1, v5\ns_lshl_b32 s32, s31, 1\nv_or_b32 v6, s32, v6\nv_lshlrev_b32 v6, 1, v6\nv_xor_b32 v6, v4, v6\nv_lshlrev_b32 v6, 4, v6")
        e("v_mul_u32_u24 v7, 3456, v1\nv_add_u32 v3, v6, v7")
        e("s_lshl_b32 s33, s30, 3\ns_mul_i32 s41, s33, 3456\ns_add_u32 s41, s41, s26")
        e("s_lshl_b32 s42, s30, 10\ns_mov_b32 s43, 0")
        def dma(idx):
            if idx < 4:
                e("s_add_u32 m0, s42, %d\ns_add_u32 s44, s40, %d" % (idx * 4096, idx * 32 * 1280))
                e("buffer_load_dwordx4 v2, s[4:7], s44 offen lds")
            else:
                G, u = (idx - 4) // 2, (idx - 4) % 2
                e("s_add_u32 m0, s42, %d\ns_add_u32 s44, s41, %d" % (16384 + G * 8192 + u * 4096, u * 32 * 3456 + G * 128))
                e("buffer_load_dwordx4 v3, s[8:11], s44 offen lds")
            if first[0] and idx == 11:
                first[0] = False
                self.gate_dma(); self.gate_prep(STG_F, 215); self.service_init()
        first = [True]
        def next_stage():
            e("s_add_u32 s40, s40, 128\ns_add_u32 s41, s41, %d" % (64 * 3456))
            self.lds_next(42, 43, STG_F)
        def after(s):
            self.gate_step(s)
            if 0 <= s <= 7: self.service_hook(s)
        self.stamp(0)
        self.loader_seq(NST, 12, dma, next_stage, after, stamp_base=1)
        self.gate_finish()
        self.service_hook("final")
        e("s_barrier")
        self.read_sync(230)
        self.gate_store()

    def ssm_compute(self):
        k = self.k; e = self.e
        ACC, F0X, F0W, F1X, F1W = 128, 16, 32, 52, 68
        AX0, AX1, AW0, AW1 = 4, 5, 6, 7
        SK, SV, SZ_, SZ2 = 88, 108, 113, 118
        def acc(m, n): return ACC + (m * 5 + n) * 4
        kA = lambda n: SK + 4 * n; kBB = lambda n: SK + 4 * n + 1; kAL = lambda n: SK + 4 * n + 2; kBE = lambda n: SK + 4 * n + 3
        e("s_lshr_b32 s30, s20, 1\ns_and_b32 s31, s20, 1")
        self.touch_p1(); self.touch_p2()
        L = self.u("NN")
        e("s_or_b32 s32, s2, s20\ns_cmp_lg_u32 s32, 0\ns_cbranch_scc1 %s" % L)
        e("s_mov_b64 s[76:77], exec\ns_mov_b64 exec, 1")
        e("v_mov_b32 v244, %d\nbuffer_load_dword v245, v244, s[12:15], 0 offen sc1\ns_waitcnt vmcnt(0)" % WS_EPOCH)
        e("v_add_u32 v245, 1, v245\nv_or_b32 v245, 1, v245\nv_mov_b32 v246, 0")
        e("buffer_store_dword v245, v244, s[12:15], 0 offen sc1\nglobal_store_dword v246, v245, s[70:71] sc1")
        e("s_mov_b64 exec, s[76:77]")
        self.label(L)
        e("v_lshrrev_b32 v1, 4, v0\nv_and_b32 v2, 15, v0")
        e("s_mul_i32 s33, s22, 80\ns_mul_i32 s34, s31, 40\ns_add_u32 s33, s33, s34")
        e("v_lshrrev_b32 v3, 1, v2\nv_add_u32 v8, s33, v3")
        e("v_lshrrev_b32 v10, 2, v2\nv_and_b32 v11, 3, v2\nv_lshrrev_b32 v12, 1, v11\nv_lshl_or_b32 v12, v10, 1, v12\nv_xor_b32 v12, v1, v12\nv_lshlrev_b32 v12, 4, v12")
        e("v_lshl_add_u32 v10, v10, 4, v11\nv_lshl_add_u32 v12, v10, 7, v12\ns_lshl_b32 s32, s30, 13")
        e("v_add_u32 v%d, s32, v12\nv_xor_b32 v%d, 64, v%d" % (AX0, AX1, AX0))
        e("v_and_b32 v10, 1, v2\nv_and_b32 v11, 6, v3\nv_or_b32 v11, v11, v10\nv_xor_b32 v11, v1, v11\nv_lshlrev_b32 v11, 4, v11\nv_lshl_add_u32 v11, v3, 7, v11")
        e("v_mul_u32_u24 v12, 10240, v10\nv_add_u32 v11, v11, v12\ns_mul_i32 s32, s31, 5120\ns_add_u32 s32, s32, 16384")
        e("v_add_u32 v%d, s32, v11\nv_xor_b32 v%d, 64, v%d" % (AW0, AW1, AW0))
        e("s_lshl_b32 s32, s30, 2\nv_add_u32 v12, s32, v1")
        for n in range(5):
            e("v_add_u32 v13, %d, v8\nv_lshrrev_b32 v14, 6, v13\nv_and_b32 v13, 63, v13\nv_lshl_add_u32 v14, v14, 1, v10\nv_lshl_add_u32 v14, v14, 6, v13\nv_lshlrev_b32 v14, 8, v14" % (8 * n))
            e("v_and_b32 v15, 3, v13\nv_bfe_u32 v13, v13, 3, 1\nv_lshl_or_b32 v15, v13, 2, v15\nv_xor_b32 v15, v12, v15\nv_lshl_add_u32 v%d, v15, 5, v14" % (SV + n))
        e("v_mul_u32_u24 v13, 640, v12\nv_lshl_add_u32 v13, v2, 2, v13\ns_mul_i32 s32, s31, 320\ns_add_u32 s32, s32, %d\nv_add_u32 v13, s32, v13" % ET_OFF)
        e("s_mul_i32 s32, s31, 1280\ns_add_u32 s32, s32, %d\nv_lshlrev_b32 v14, 4, v2\nv_add_u32 v14, s32, v14" % KT_OFF)
        self.stamp(1)
        e("s_barrier")
        self.stamp(2)
        def reads(kk, which):
            X = F0X if which == 0 else F1X; W = F0W if which == 0 else F1W
            ax = AX0 if kk == 0 else AX1; aw = AW0 if kk == 0 else AW1
            out = []
            for n in range(5):
                out.append("ds_read_b128 %s, v%d offset:%d" % (vr(W + 4 * n), aw, n * 1024))
                if n < 4: out.append("ds_read_b128 %s, v%d offset:%d" % (vr(X + 4 * n), ax, n * 512))
            return out
        def mfmas(which, first):
            X = F0X if which == 0 else F1X; W = F0W if which == 0 else F1W
            return ["v_mfma_f32_16x16x32_bf16 %s, %s, %s, %s" % (vr(acc(m, n)), vr(X + 4 * m), vr(W + 4 * n), "0" if first else vr(acc(m, n)))
                    for n in range(5) for m in range(4)]
        self.gemm_loop("SSM", reads, mfmas, [AX0, AX1, AW0, AW1], STG_S, NST,
                       last_fill=["ds_read_b128 %s, v14 offset:%d" % (vr(SK + 4 * n), 256 * n) for n in range(5)])
        self.stamp(3)
        e("s_waitcnt lgkmcnt(0)\ns_nop 4")
        def reg(tau, n): return acc(tau >> 2, n) + (tau & 3)
        for tau in range(1, 16):
            for n in range(5): e("v_fmac_f32 v%d, v%d, v%d" % (reg(tau, n), kA(n), reg(tau - 1, n)))
            for n in range(5): e("v_fmac_f32_dpp v%d, v%d, v%d %s" % (reg(tau, n), reg(tau - 1, n), kBB(n), DPP))
        for n in range(5): e("ds_write_b32 v13, v%d offset:%d" % (reg(15, n), 64 * n))
        e("s_waitcnt lgkmcnt(0)\ns_barrier")
        self.stamp(4)
        def preg(tau, n):
            i = tau * 5 + n
            return 16 + i if i < 72 else 208 + (i - 72)
        for tau in range(16):
            for n in range(5): e("v_mul_f32 v%d, v%d, v%d" % (preg(tau, n), kAL(n), reg(tau, n)))
            for n in range(5): e("v_fmac_f32_dpp v%d, v%d, v%d %s" % (preg(tau, n), reg(tau, n), kBE(n), DPP))
        NB = 220
        for n in range(5): e("v_sub_f32 v%d, 0, v%d" % (NB + n, kBB(n)))
        self.read_sync(244)
        e("s_mul_i32 s33, s21, %d\ns_add_u32 s33, s33, %d" % (20 * 16384, WS_MIDS))
        e("s_barrier")
        self.stamp(5)
        for n in range(5): e("ds_read_b32 v%d, v13 offset:%d" % (SZ_ + n, 5120 + 64 * n))
        e("s_waitcnt lgkmcnt(0)")
        for n in range(5): e("v_mul_f32 v%d, v%d, v%d" % (SZ2 + n, kA(n), SZ_ + n))
        for n in range(5): e("v_fmac_f32_dpp v%d, v%d, v%d %s" % (SZ2 + n, SZ_ + n, kBB(n), DPP))
        for n in range(5): e("v_mul_f32 v%d, v%d, v%d" % (SZ_ + n, kAL(n), SZ2 + n))
        for n in range(5): e("v_fmac_f32_dpp v%d, v%d, v%d %s" % (SZ_ + n, SZ2 + n, kBE(n), DPP))
        def post(fl):
            cur, nxt = SZ_, SZ2
            TC = 228; cnt = [0]
            def pack_store(ch):
                for n in range(5):
                    t = TC + (cnt[0] % 4) * 4; cnt[0] += 1
                    for mm in range(2):
                        a = acc(2 * ch + mm, n)
                        e("v_cvt_pk_bf16_f32 v%d, v%d, v%d\nv_cvt_pk_bf16_f32 v%d, v%d, v%d" % (t + 2 * mm, a, a + 1, t + 2 * mm + 1, a + 2, a + 3))
                    e("buffer_store_dwordx4 %s, v%d, s[12:15], s33 offen offset:%d %s" % (vr(t), SV + n, 16 * ch, fl))
            for tau in range(16):
                for n in range(5): e("v_add_f32 v%d, v%d, v%d" % (reg(tau, n), preg(tau, n), cur + n))
                if tau < 15:
                    for n in range(5): e("v_mul_f32 v%d, v%d, v%d" % (nxt + n, kA(n), cur + n))
                    for n in range(5): e("v_fmac_f32_dpp v%d, v%d, v%d %s" % (nxt + n, cur + n, NB + n, DPP))
                    cur, nxt = nxt, cur
                if tau == 8: pack_store(0)
            pack_store(1)
        e("s_cmp_eq_u32 s91, 1\ns_cbranch_scc1 SP_F")
        post("sc1"); e("s_branch SP_E")
        self.label("SP_F"); post("")
        self.label("SP_E")
        self.stamp(6)
        e("s_waitcnt vmcnt(0)")
        self.stamp(7)
        e("s_barrier")

    def ssm_loader(self):
        k = self.k; e = self.e
        RA, RB, QA, QB = 100, 108, 120, 136
        self.x_loader_common()
        e("s_and_b32 s31, s30, 1")
        e("s_cmp_eq_u32 s31, 1\ns_cselect_b32 s8, s56, s8\ns_cselect_b32 s9, s57, s9")
        e("s_lshr_b32 s32, s30, 1\ns_lshl_b32 s32, s32, 1\nv_and_b32 v6, 1, v5\nv_or_b32 v6, s32, v6\nv_xor_b32 v6, v4, v6\nv_lshlrev_b32 v6, 4, v6")
        e("v_add_u32 v2, v6, v7\nv_xor_b32 v8, 64, v2")
        e("v_and_b32 v6, 6, v1\nv_or_b32 v6, s31, v6\nv_xor_b32 v6, v4, v6\nv_lshlrev_b32 v6, 4, v6\nv_add_u32 v3, v6, v7")
        e("s_mul_i32 s41, s22, 80\ns_lshr_b32 s33, s30, 1\ns_lshl_b32 s34, s33, 3\ns_add_u32 s41, s41, s34\ns_mul_i32 s41, s41, 1280")
        e("s_lshl_b32 s42, s30, 10")
        e("s_mul_i32 s46, s31, 10240\ns_lshl_b32 s34, s33, 10\ns_add_u32 s46, s46, s34\ns_add_u32 s46, s46, 16384")
        e("s_mov_b32 s47, 0\ns_mov_b32 s43, 0")
        first = [True]
        def dma(idx):
            if idx < 4:
                e("s_add_u32 s44, s42, s47\ns_add_u32 m0, s44, %d\ns_add_u32 s44, s40, %d" % (idx * 4096, idx * 32 * 1280))
                e("buffer_load_dwordx4 v%d, s[4:7], s44 offen lds" % (2 if idx % 2 == 0 else 8))
            else:
                u = idx - 4
                e("s_add_u32 s44, s46, s47\ns_add_u32 m0, s44, %d\ns_add_u32 s44, s41, %d" % (u * 2048, u * 16 * 1280))
                e("buffer_load_dwordx4 v3, s[8:11], s44 offen lds")
            if first[0] and idx == 8:
                first[0] = False
                self.gate_dma()
                e("s_and_b32 s32, s22, 3\ns_lshl_b32 s32, s32, 2\ns_add_u32 s32, s32, s30\ns_lshr_b32 s32, s32, 1\ns_and_b32 s32, s32, 3\ns_lshl_b32 s32, s32, 1")
                e("v_and_b32 v215, 1, v5\nv_or_b32 v215, s32, v215")
                self.gate_prep(STG_S, 215); self.service_init()
                e("s_lshl_b32 s32, s30, 6\nv_add_u32 v10, s32, v0\nv_lshrrev_b32 v11, 1, v10\ns_mul_i32 s32, s22, 80\nv_add_u32 v11, s32, v11\nv_lshlrev_b32 v11, 1, v11")
                e("buffer_load_ushort v20, v11, s[16:19], 0 offen\nbuffer_load_ushort v21, v11, s[48:51], 0 offen\nbuffer_load_ushort v22, v11, s[52:55], 0 offen")
        def next_stage():
            e("s_add_u32 s40, s40, 128\ns_add_u32 s41, s41, 128")
            self.lds_next(47, 43, STG_S)
        def cmul(da, db, xa, xb, ya, yb):
            e("v_mul_f32 v%d, v%d, v%d\nv_mul_f32 v%d, v%d, v%d\nv_fma_f32 v%d, -v%d, v%d, v%d\nv_fmac_f32 v%d, v%d, v%d" % (da, xa, ya, db, xa, yb, da, xb, yb, da, db, xb, ya))
        def csq(va, vb, t):
            e("v_mul_f32 v%d, v%d, v%d\nv_mul_f32 v%d, v%d, v%d\nv_fma_f32 v%d, -v%d, v%d, v%d\nv_add_f32 v%d, v%d, v%d" % (t, va, vb, va, va, va, va, vb, vb, va, vb, t, t))
        def consts():
            t0 = 30
            e("v_lshlrev_b32 v20, 16, v20\nv_lshlrev_b32 v21, 16, v21\nv_lshlrev_b32 v22, 16, v22")
            e("v_mul_f32 v22, 0x3fb8aa3b, v22\nv_exp_f32 v22, v22\ns_nop 0\nv_cvt_pk_bf16_f32 v22, v22, v22\nv_lshlrev_b32 v22, 16, v22")
            e("v_mul_f32 v30, v22, v20\nv_mul_f32 v31, v22, v21\nv_mul_f32 v30, 0x3fb8aa3b, v30\nv_exp_f32 v30, v30")
            e("v_mul_f32 v31, 0.15915494, v31\nv_fract_f32 v31, v31\ns_nop 0\nv_cos_f32 v32, v31\nv_sin_f32 v33, v31\ns_nop 0")
            e("v_mul_f32 v23, v30, v32\nv_mul_f32 v24, v30, v33")
            e("v_and_b32 v27, 1, v0\nv_cvt_f32_u32 v27, v27\nv_fma_f32 v27, v27, 2.0, -1.0")
            e("v_add_f32 v30, -1.0, v23\nv_mul_f32 v31, v20, v20\nv_fmac_f32 v31, v21, v21\nv_rcp_f32 v31, v31")
            e("v_mul_f32 v32, v30, v20\nv_fmac_f32 v32, v24, v21\nv_mul_f32 v33, v24, v20\nv_fma_f32 v33, -v30, v21, v33")
            e("v_add_f32 v31, v31, v31\nv_mul_f32 v32, v32, v31\nv_mul_f32 v33, v33, v31")
            e("v_mov_b32 v36, v23\nv_mul_f32 v37, v27, v24\nv_mul_f32 v38, v27, v32\nv_sub_f32 v38, 0, v38\nv_sub_f32 v39, 0, v33")
            e("v_lshlrev_b32 v12, 4, v10\nv_add_u32 v12, %d, v12" % KT_OFF)
            e("v_cmp_gt_u32 vcc, 160, v10\ns_and_saveexec_b64 s[74:75], vcc\ns_cbranch_execz SSM_KT_SKIP\nds_write_b128 v12, v[36:39]")
            self.label("SSM_KT_SKIP")
            e("s_mov_b64 exec, s[74:75]")
            e("; SPLIT")
            for _ in range(4): csq(23, 24, 30)
            e("v_mov_b32 v%d, v23\nv_mov_b32 v%d, v24" % (RA + 1, RB + 1))
            for kk in range(2, 8): cmul(RA + kk, RB + kk, RA + kk - 1, RB + kk - 1, RA + 1, RB + 1)
            cmul(QA + 1, QB + 1, RA + 7, RB + 7, RA + 1, RB + 1)
            for i in range(2, 15): cmul(QA + i, QB + i, QA + i - 1, QB + i - 1, QA + 1, QB + 1)
            for kk in range(1, 8): e("v_mul_f32 v%d, v27, v%d" % (RB + kk, RB + kk))
            for i in range(1, 15): e("v_mul_f32 v%d, v27, v%d" % (QB + i, QB + i))
            e("s_waitcnt lgkmcnt(0)")
        lines = k.capture(consts)
        i0 = lines.index("; SPLIT")
        chunks = [lines[:i0]]; rest = lines[i0 + 1:]
        per = (len(rest) + 5) // 6
        for i in range(0, len(rest), per): chunks.append(rest[i:i + per])
        def after(s):
            self.gate_step(s)
            if 0 <= s < len(chunks): k.L.extend(chunks[s])
            if 0 <= s <= 7: self.service_hook(s)
        self.stamp(0)
        self.loader_seq(NST, 9, dma, next_stage, after, stamp_base=1)
        self.gate_finish()
        self.service_hook("final")
        e("v_lshlrev_b32 v12, 2, v10\nv_add_u32 v12, %d, v12\nv_lshlrev_b32 v13, 3, v10" % ET_OFF)
        e("s_mul_i32 s33, s22, %d\ns_add_u32 s33, s33, %d\ns_mul_i32 s34, s21, 1280\ns_add_u32 s34, s34, s33" % (16 * 1280, WS_E))
        e("s_setprio 3")
        e("s_barrier")
        self.stamp(4)
        self.read_sync(230)
        self.gate_store()
        e("s_cmp_ge_u32 s30, 3\ns_cbranch_scc1 SSM_H_BX2")
        e("v_cmp_gt_u32 vcc, 160, v10\ns_and_saveexec_b64 s[74:75], vcc")
        for sg in range(8): e("ds_read_b32 v%d, v12 offset:%d" % (40 + sg, sg * 640))
        e("v_mov_b32 v59, s90")
        e("s_waitcnt lgkmcnt(0)")
        e("v_mov_b32 v58, v47\nv_mul_f32 v56, v%d, v40\nv_mul_f32 v57, v%d, v41" % (RA + 7, RA + 6))
        e("v_fmac_f32_dpp v56, v40, v%d %s\nv_fmac_f32_dpp v57, v41, v%d %s" % (RB + 7, DPP, RB + 6, DPP))
        accs = [58, 56, 57]
        for i, kk in enumerate(range(2, 7)):
            a = accs[i % 3]
            e("v_fmac_f32 v%d, v%d, v%d\nv_fmac_f32_dpp v%d, v%d, v%d %s" % (a, RA + 7 - kk, 40 + kk, a, 40 + kk, RB + 7 - kk, DPP))
        e("v_add_f32 v58, v58, v56\nv_add_f32 v58, v58, v57")
        e("buffer_store_dwordx2 v[58:59], v13, s[12:15], s34 offen sc1")
        self.stamp(5)
        e("v_mov_b32 v60, 0\ns_mov_b32 s36, 0")
        def lb_loads():
            L = self.u("LB")
            for i in range(15):
                e("s_cmp_le_u32 s21, %d\ns_cbranch_scc1 %s" % (i, L))
                e("s_sub_u32 s35, s34, %d\nbuffer_load_dwordx2 v[%d:%d], v13, s[12:15], s35 offen sc1" % ((i + 1) * 1280, 64 + 2 * i, 65 + 2 * i))
            self.label(L)
        lb_loads()
        e("v_mov_b32 v50, 0\nv_mov_b32 v51, v40")
        for kk in range(1, 7):
            e("v_fma_f32 v%d, v%d, v%d, v%d\ns_nop 0\nv_fmac_f32_dpp v%d, v%d, v%d %s\ns_nop 0" % (51 + kk, RA + 1, 50 + kk, 40 + kk, 51 + kk, 50 + kk, RB + 1, DPP))
        e("s_cmp_eq_u32 s21, 0\ns_cbranch_scc1 SSM_H_HDONE")
        self.label("SSM_H_POLL")
        e("s_waitcnt vmcnt(0)\ns_mov_b64 s[76:77], exec")
        for i in range(15):
            if i > 0: e("s_cmp_le_u32 s21, %d\ns_cbranch_scc1 SSM_H_CHECKED" % i)
            e("v_cmp_eq_u32 vcc, s90, v%d\ns_and_b64 s[76:77], s[76:77], vcc" % (65 + 2 * i))
        self.label("SSM_H_CHECKED")
        e("s_cmp_eq_u64 s[76:77], exec\ns_cbranch_scc1 SSM_H_OK")
        e("s_add_u32 s36, s36, 1\ns_cmp_lt_u32 s36, 0x4000\ns_cbranch_scc0 SSM_H_OK")
        lb_loads()
        e("s_branch SSM_H_POLL")
        self.label("SSM_H_OK")
        self.stamp(6)
        e("v_mov_b32 v60, v64\nv_mov_b32 v61, 0\nv_mov_b32 v62, 0")
        accs = [61, 62, 60]
        for i in range(1, 15):
            a = accs[(i - 1) % 3]
            e("s_cmp_le_u32 s21, %d\ns_cbranch_scc1 SSM_H_HSUM" % i)
            e("v_fmac_f32 v%d, v%d, v%d\nv_fmac_f32_dpp v%d, v%d, v%d %s" % (a, QA + i, 64 + 2 * i, a, 64 + 2 * i, QB + i, DPP))
        self.label("SSM_H_HSUM")
        e("v_add_f32 v60, v60, v61\nv_add_f32 v60, v60, v62")
        self.label("SSM_H_HDONE")
        e("v_add_u32 v12, 5120, v12\ns_nop 0\nds_write_b32 v12, v60")
        for kk in range(1, 8): e("v_fmac_f32 v%d, v%d, v60" % (50 + kk, RA + kk))
        for kk in range(1, 8): e("v_fmac_f32_dpp v%d, v60, v%d %s" % (50 + kk, RB + kk, DPP))
        for kk in range(1, 8): e("ds_write_b32 v12, v%d offset:%d" % (50 + kk, kk * 640))
        e("s_waitcnt lgkmcnt(0)\ns_mov_b64 exec, s[74:75]")
        self.label("SSM_H_BX2")
        e("s_barrier")
        self.stamp(7)

    def p2_setup_scalars(self, typ):
        e = self.e
        e("s_and_b32 s23, s22, 3\ns_lshr_b32 s24, s22, 2")
        if typ == "ffn": e("s_cmp_eq_u32 s24, 2\ns_cselect_b32 s25, 14, 13")
        else: e("s_mov_b32 s25, 10")

    def p2_compute(self, typ, pfx):
        k = self.k; e = self.e
        ACC, F0M, F0W, F1M, F1W = 128, 16, 32, 52, 68
        AM, AW = 4, 8
        def acc(m, n): return ACC + (m * 5 + n) * 4
        self.p2_setup_scalars(typ)
        e("s_load_dwordx2 s[40:41], s[0:1], %d\ns_load_dwordx2 s[42:43], s[0:1], %d\ns_load_dwordx2 s[44:45], s[0:1], %d" % (KA['out'], KA['dskip'], KA['b2']))
        e("v_lshrrev_b32 v1, 4, v0\nv_and_b32 v2, 15, v0\nv_bfe_u32 v13, v0, 2, 2\nv_and_b32 v14, 3, v0")
        if typ == "ffn":
            e("s_lshl_b32 s32, s30, 12\nv_lshlrev_b32 v%d, 4, v0\nv_add_u32 v%d, s32, v%d" % (AM, AM, AM))
            e("v_lshl_add_u32 v15, v1, 2, v13\nv_lshrrev_b32 v3, 1, v15\nv_and_b32 v3, 3, v3\nv_lshlrev_b32 v15, 7, v15\nv_lshl_add_u32 v15, v14, 3, v15")
            e("s_and_b32 s35, s23, 1\ns_lshl_b32 s35, s35, 6\ns_mul_i32 s32, s31, 160\ns_add_u32 s35, s35, s32")
            for n in range(5):
                e("s_add_u32 s33, s35, %d\ns_lshr_b32 s34, s33, 7\ns_lshl_b32 s34, s34, 13\ns_add_u32 s34, s34, 16384\ns_bfe_u32 s33, s33, 0x20005" % (32 * n))
                e("v_xor_b32 v14, s33, v3\nv_lshl_add_u32 v14, v14, 5, v15\nv_add_u32 v%d, s34, v14" % (AW + n))
            addr_regs = [AM] + [AW + n for n in range(5)]
        else:
            e("v_lshl_add_u32 v15, v1, 3, v13\nv_lshlrev_b32 v15, 8, v15\nv_lshl_add_u32 v15, v14, 3, v15\nv_and_b32 v3, 1, v1\nv_lshl_or_b32 v3, v3, 2, v13")
            e("s_lshl_b32 s32, s30, 2")
            for m in range(4):
                e("s_add_u32 s33, s32, %d\nv_xor_b32 v14, s33, v3\nv_lshl_add_u32 v%d, v14, 5, v15" % (m, AM + m))
            e("v_lshrrev_b32 v3, 1, v2\nv_xor_b32 v3, v1, v3\nv_lshlrev_b32 v3, 4, v3\nv_lshl_add_u32 v3, v2, 7, v3")
            e("s_mul_i32 s32, s31, 10240\ns_add_u32 s32, s32, 16384\nv_add_u32 v%d, s32, v3\nv_xor_b32 v%d, 64, v%d" % (AW, AW + 1, AW))
            addr_regs = [AM + m for m in range(4)] + [AW, AW + 1]
        EX, ED, EB, EG, SC = 208, 218, 228, 238, 242
        e("s_lshl_b32 s32, s21, 7\ns_lshl_b32 s33, s30, 6\ns_add_u32 s32, s32, s33\ns_lshl_b32 s33, s24, 4\ns_add_u32 s32, s32, s33")
        e("v_add_u32 v14, s32, v2\ns_mul_i32 s33, s23, 160\ns_mul_i32 s34, s31, 80\ns_add_u32 s33, s33, s34\nv_lshl_add_u32 v15, v1, 2, s33")
        e("v_mul_u32_u24 v3, 640, v14\nv_add_u32 v3, v3, v15\nv_lshlrev_b32 v246, 2, v3\nv_lshlrev_b32 v3, 1, v3\nv_lshlrev_b32 v15, 1, v15")
        e("s_waitcnt lgkmcnt(0)")
        srd(k, 16, 40, SZ['out']); srd(k, 48, 42, SZ['dskip']); srd(k, 52, 44, SZ['b2'])
        for n in range(5):
            e("buffer_load_dwordx2 %s, v3, s[4:7], 0 offen offset:%d" % (vr(EX + 2 * n, 2), 32 * n))
            e("buffer_load_dwordx2 %s, v15, s[48:51], 0 offen offset:%d" % (vr(ED + 2 * n, 2), 32 * n))
            e("buffer_load_dwordx2 %s, v15, s[52:55], 0 offen offset:%d" % (vr(EB + 2 * n, 2), 32 * n))
        self.stamp(8)
        e("s_barrier")
        self.stamp(9)
        e("s_lshl_b32 s32, s21, 2\ns_add_u32 s32, s32, s24\ns_lshl_b32 s32, s32, 9\ns_add_u32 s32, s32, %d\ns_lshl_b32 s33, s30, 8\ns_add_u32 s32, s32, s33" % WS_G)
        e("v_lshlrev_b32 v14, 2, v2")
        for m in range(4): e("buffer_load_dword v%d, v14, s[12:15], s32 offen offset:%d sc1" % (EG + m, 64 * m))
        def reads(kk, which):
            M = F0M if which == 0 else F1M; W = F0W if which == 0 else F1W
            out = []
            for n in range(5):
                if typ == "ffn":
                    for h in range(2): out.append("ds_read_b64_tr_b16 %s, v%d offset:%d" % (vr(W + 4 * n + 2 * h, 2), AW + n, kk * 4096 + h * 2048))
                    if n < 4: out.append("ds_read_b128 %s, v%d offset:%d" % (vr(M + 4 * n), AM, n * 1024 + kk * 8192))
                else:
                    out.append("ds_read_b128 %s, v%d offset:%d" % (vr(W + 4 * n), AW + kk, n * 2048))
                    if n < 4:
                        for h in range(2): out.append("ds_read_b64_tr_b16 %s, v%d offset:%d" % (vr(M + 4 * n + 2 * h, 2), AM + n, kk * 8192 + h * 1024))
            return out
        def mfmas(which, first):
            M = F0M if which == 0 else F1M; W = F0W if which == 0 else F1W
            return ["v_mfma_f32_16x16x32_bf16 %s, %s, %s, %s" % (vr(acc(m, n)), vr(W + 4 * n), vr(M + 4 * m), "0" if first else vr(acc(m, n)))
                    for n in range(5) for m in range(4)]
        self.gemm_loop(pfx, reads, mfmas, addr_regs, STG2, "s25")
        self.stamp(10)
        e("s_waitcnt vmcnt(0)")
        for m in range(4):
            e(("v_sub_f32 v%d, 1.0, v%d" if typ == "ffn" else "v_mov_b32 v%d, v%d") % (SC + m, EG + m))
        e("s_lshl_b32 s32, s21, 2\ns_add_u32 s32, s32, s23\ns_mul_i32 s33, s32, %d\ns_add_u32 s33, s33, %d" % (16 * 20 * 1024, WS_XCH))
        e("s_mul_i32 s34, s20, 5120\ns_add_u32 s33, s33, s34\ns_mul_i32 s34, s24, %d\ns_add_u32 s40, s33, s34" % (20 * 1024))
        e("v_lshlrev_b32 v14, 4, v0")
        e("s_lshl_b32 s41, s32, 10\ns_lshl_b32 s34, s20, 6\ns_add_u32 s41, s41, s34\ns_add_u32 s41, s41, %d" % WS_XF)
        def epi(q, fl):
            L = self.u(pfx + "X")
            for m in range(4):
                if m == q: continue
                e("s_add_u32 s34, s40, %d\ns_add_u32 s35, s34, 4096" % (m * 4 * 20 * 1024))
                for n in range(5):
                    a = acc(m, n)
                    for r in range(4): e("v_mul_f32 v%d, v%d, v%d" % (a + r, a + r, SC + m))
                    if n < 4: e("buffer_store_dwordx4 %s, v14, s[12:15], s34 offen offset:%d %s" % (vr(a), n * 1024, fl))
                    else: e("buffer_store_dwordx4 %s, v14, s[12:15], s35 offen %s" % (vr(a), fl))
            gq = EG + q
            e("v_sub_f32 v15, 1.0, v%d" % gq)
            for n in range(5):
                a = acc(q, n)
                for r in range(4): e("v_mul_f32 v%d, v%d, v%d" % (a + r, a + r, SC + q))
                for h in range(2):
                    xs, ds, bs = EX + 2 * n + h, ED + 2 * n + h, EB + 2 * n + h
                    e("v_lshlrev_b32 v16, 16, v%d\nv_and_b32 v17, 0xffff0000, v%d\nv_lshlrev_b32 v18, 16, v%d\nv_and_b32 v19, 0xffff0000, v%d" % (xs, xs, ds, ds))
                    e("v_lshlrev_b32 v20, 16, v%d\nv_and_b32 v21, 0xffff0000, v%d\nv_mul_f32 v16, v16, v18\nv_mul_f32 v17, v17, v19" % (bs, bs))
                    e("v_fmac_f32 v%d, v%d, v16\nv_fmac_f32 v%d, v%d, v17\nv_fmac_f32 v%d, v15, v20\nv_fmac_f32 v%d, v15, v21" % (a + 2 * h, gq, a + 2 * h + 1, gq, a + 2 * h, a + 2 * h + 1))
            e("s_waitcnt vmcnt(0)")
            self.stamp(11)
            e("s_mov_b64 s[76:77], exec\ns_mov_b64 exec, 1")
            e("v_mov_b32 v16, s90\nv_mov_b32 v17, %d" % (q * 4))
            for m in range(4):
                if m == q: continue
                e("s_add_u32 s34, s41, %d\nbuffer_store_dword v16, v17, s[12:15], s34 offen %s" % (m * 256, fl))
            e("s_add_u32 s34, s41, %d\nv_mov_b32 v17, 0\ns_mov_b32 s36, 0" % (q * 256))
            self.label(L + "P")
            e("buffer_load_dwordx4 v[20:23], v17, s[12:15], s34 offen sc1\ns_waitcnt vmcnt(0)\ns_mov_b32 s35, 1")
            for m in range(4):
                if m == q: continue
                e("v_readfirstlane_b32 s37, v%d\ns_cmp_eq_u32 s37, s90\ns_cselect_b32 s35, s35, 0" % (20 + m))
            e("s_cmp_eq_u32 s35, 1\ns_cbranch_scc1 %sD" % L)
            e("s_add_u32 s36, s36, 1\ns_cmp_lt_u32 s36, 0x4000\ns_cbranch_scc0 %sD" % L)
            e("s_branch %sP" % L)
            self.label(L + "D")
            e("s_mov_b64 exec, s[76:77]")
            self.stamp(12)
            R = 16; idx = 0
            for src in range(4):
                if src == q: continue
                e("s_add_u32 s34, s33, %d\ns_add_u32 s35, s34, 4096" % ((q * 4 + src) * 20 * 1024))
                for n in range(5):
                    d = R + (n * 3 + idx) * 4
                    if n < 4: e("buffer_load_dwordx4 %s, v14, s[12:15], s34 offen offset:%d sc1" % (vr(d), n * 1024))
                    else: e("buffer_load_dwordx4 %s, v14, s[12:15], s35 offen sc1" % vr(d))
                idx += 1
            e("s_waitcnt vmcnt(0)")
            for n in range(5):
                a = acc(q, n)
                for i in range(3):
                    s_ = R + (n * 3 + i) * 4
                    e("v_pk_add_f32 %s, %s, %s\nv_pk_add_f32 %s, %s, %s" % (vr(a, 2), vr(a, 2), vr(s_, 2), vr(a + 2, 2), vr(a + 2, 2), vr(s_ + 2, 2)))
                e("buffer_store_dwordx4 %s, v246, s[16:19], 0 offen offset:%d" % (vr(a), 64 * n))
        q0 = 2 if typ == "ffn" else 0
        e("s_nop 7")
        e("s_sub_u32 s32, s24, %d\ns_lshl_b32 s34, s91, 1\ns_or_b32 s32, s32, s34" % q0)
        e("s_cmp_eq_u32 s32, 2\ns_cbranch_scc1 %s_F0\ns_cmp_eq_u32 s32, 3\ns_cbranch_scc1 %s_F1\ns_cmp_eq_u32 s32, 0\ns_cbranch_scc1 %s_S0" % (pfx, pfx, pfx))
        epi(q0 + 1, "sc1"); e("s_branch %s_END" % pfx)
        self.label(pfx + "_S0"); epi(q0, "sc1"); e("s_branch %s_END" % pfx)
        self.label(pfx + "_F1"); epi(q0 + 1, ""); e("s_branch %s_END" % pfx)
        self.label(pfx + "_F0"); epi(q0, "")
        self.label(pfx + "_END")
        if self.stamps:
            e("s_waitcnt vmcnt(0)")
            self.stamp(13)

    def p2_loader(self, typ, pfx):
        k = self.k; e = self.e
        self.p2_setup_scalars(typ)
        if typ == "ffn":
            e("s_load_dwordx2 s[60:61], s[0:1], %d" % KA['w2'])
        else:
            e("s_load_dwordx2 s[60:61], s[0:1], %d\ns_load_dwordx2 s[62:63], s[0:1], %d" % (KA['cre'], KA['cim']))
        e("v_lshrrev_b32 v1, 3, v0\nv_and_b32 v4, 7, v0\nv_lshrrev_b32 v5, 4, v0\nv_lshlrev_b32 v2, 4, v0\nv_mul_u32_u24 v7, 1280, v1")
        e("s_lshl_b32 s42, s30, 10\ns_mov_b32 s43, 0")
        if typ == "ffn":
            e("v_and_b32 v6, 3, v5\nv_lshlrev_b32 v6, 1, v6\nv_xor_b32 v6, v4, v6\nv_lshlrev_b32 v6, 4, v6\nv_add_u32 v3, v6, v7")
            e("s_cmp_eq_u32 s24, 2\ns_cselect_b32 s32, 0, 14")
            e("s_mul_i32 s40, s21, 27\ns_add_u32 s40, s40, s32\ns_lshl_b32 s40, s40, 14\ns_lshl_b32 s33, s30, 10\ns_add_u32 s40, s40, s33")
            e("s_lshl_b32 s41, s32, 6\ns_lshl_b32 s33, s30, 3\ns_add_u32 s41, s41, s33\ns_mul_i32 s41, s41, 1280")
            e("s_mul_i32 s33, s23, 320\ns_and_b32 s33, s33, 0xffffff80\ns_add_u32 s41, s41, s33")
            e("s_waitcnt lgkmcnt(0)")
            srd(k, 8, 60, SZ['w2'])
            NW = 6
            def wdma(idx):
                G, u = idx // 2, idx % 2
                e("s_add_u32 m0, s42, %d\ns_add_u32 s44, s41, %d" % (16384 + G * 8192 + u * 4096, u * 32 * 1280 + G * 128))
                e("buffer_load_dwordx4 v3, s[8:11], s44 offen lds")
            def next_stage():
                e("s_add_u32 s40, s40, 16384\ns_add_u32 s41, s41, %d" % (64 * 1280))
                self.lds_next(42, 43, STG2)
        else:
            e("s_and_b32 s31, s30, 1\ns_lshl_b32 s32, s31, 2\nv_add_u32 v6, s32, v5\nv_and_b32 v6, 7, v6\nv_xor_b32 v6, v4, v6\nv_lshlrev_b32 v6, 4, v6\nv_add_u32 v3, v6, v7")
            e("s_mul_i32 s40, s21, 20\ns_mul_i32 s33, s24, 10\ns_add_u32 s40, s40, s33\ns_lshl_b32 s40, s40, 14\ns_lshl_b32 s33, s30, 10\ns_add_u32 s40, s40, s33\ns_add_u32 s40, s40, %d" % WS_MIDS)
            e("s_mul_i32 s41, s23, 160\ns_lshl_b32 s33, s30, 3\ns_add_u32 s41, s41, s33\ns_mul_i32 s41, s41, 1280\ns_mul_i32 s33, s24, 640\ns_add_u32 s41, s41, s33")
            e("s_mov_b32 s46, 0\ns_waitcnt lgkmcnt(0)")
            srd(k, 8, 60, SZ['cre'])
            NW = 5
            def wdma(idx):
                e("s_add_u32 m0, s42, %d\ns_add_u32 s44, s41, %d" % (16384 + idx * 4096, idx * 32 * 1280))
                e("buffer_load_dwordx4 v3, s[8:11], s44 offen lds")
            def next_stage():
                e("s_add_u32 s40, s40, 16384\ns_xor_b32 s46, s46, 1\ns_cmp_eq_u32 s46, 1")
                e("s_cselect_b32 s8, s62, s60\ns_cselect_b32 s32, s63, s61\ns_cselect_b32 s45, 0, 128\ns_and_b32 s9, s32, 0xffff\ns_add_u32 s41, s41, s45")
                self.lds_next(42, 43, STG2)
        def mdma(u):
            e("s_add_u32 m0, s42, %d\ns_add_u32 s44, s40, %d" % (u * 4096, u * 4096))
            e("buffer_load_dwordx4 v2, s[12:15], s44 offen sc1 lds")
        N = NW + 4
        def dma(i):
            if i < NW: wdma(i)
            else: mdma(i - NW)
        LA = min(self.LA, N)
        for i in range(NW): wdma(i)
        e("s_waitcnt vmcnt(0)")
        self.stamp(8)
        e("s_barrier")
        L = self.u(pfx + "PF")
        e("s_lshl_b32 s32, s21, 2\ns_add_u32 s32, s32, s24\ns_lshl_b32 s32, s32, 6\ns_add_u32 s32, s32, %d" % WS_PF)
        e("s_mov_b64 s[76:77], exec\ns_mov_b64 exec, 1")
        e("v_mov_b32 v16, s90\ns_lshl_b32 s33, s23, 2\nv_mov_b32 v17, s33")
        e("s_cmp_eq_u32 s30, 0\ns_cbranch_scc0 %s_NF" % L)
        e("s_cmp_eq_u32 s91, 1\ns_cbranch_scc1 %s_FF" % L)
        e("buffer_store_dword v16, v17, s[12:15], s32 offen sc1\ns_branch %s_NF" % L)
        self.label(L + "_FF")
        e("buffer_store_dword v16, v17, s[12:15], s32 offen")
        self.label(L + "_NF")
        e("v_mov_b32 v17, 0\ns_mov_b32 s36, 0")
        self.label(L + "_P")
        e("buffer_load_dwordx4 v[20:23], v17, s[12:15], s32 offen sc1\ns_waitcnt vmcnt(0)\ns_mov_b32 s35, 1")
        for m in range(4): e("v_readfirstlane_b32 s37, v%d\ns_cmp_eq_u32 s37, s90\ns_cselect_b32 s35, s35, 0" % (20 + m))
        e("s_cmp_eq_u32 s35, 1\ns_cbranch_scc1 %s_D" % L)
        e("s_add_u32 s36, s36, 1\ns_cmp_lt_u32 s36, 0x4000\ns_cbranch_scc0 %s_D" % L)
        e("s_branch %s_P" % L)
        self.label(L + "_D")
        e("s_mov_b64 exec, s[76:77]")
        self.stamp(9)
        for u in range(4): mdma(u)
        next_stage()
        for i in range(LA): dma(i)
        e("s_waitcnt vmcnt(%d)\ns_barrier" % LA)
        self.stamp(10)
        e("s_sub_u32 s49, s25, 2")
        self.label(pfx + "_LL")
        for i in range(LA, N): dma(i)
        next_stage()
        for i in range(LA): dma(i)
        e("s_waitcnt vmcnt(%d)\ns_barrier" % LA)
        e("s_sub_u32 s49, s49, 1\ns_cmp_lg_u32 s49, 0\ns_cbranch_scc1 %s_LL" % pfx)
        for i in range(LA, N): dma(i)
        e("s_waitcnt vmcnt(0)\ns_barrier")
        self.stamp(11)

    def build(self):
        k = self.k; e = self.e
        hdr = open("cdna_kernels/%s.s.ref" % NAME).read().split("; Override launch geometry")[0]
        out = hdr + "; @launch grid=(256,1,1) block=(512,1,1) lds=%d\n" % LDS_TOTAL
        out += '.amdgcn_target "amdgcn-amd-amdhsa--gfx950"\n.text\n.globl %s\n.p2align 8\n.type %s,@function\n' % (KNAME, KNAME)
        self.label(KNAME)
        e("s_cmp_ge_u32 s2, 256\ns_cbranch_scc1 DONE")
        loads = [("x", 40), ("w1", 42), ("ws", 44), ("b1", 46), ("dbg", 70), ("bre", 60), ("bim", 62), ("lre", 64), ("lim", 66), ("logdt", 68), ("gw", 84)]
        for n, s in loads: e("s_load_dwordx2 s[%d:%d], s[0:1], %d" % (s, s + 1, KA[n]))
        e("s_and_b32 s25, s2, 7\ns_lshr_b32 s26, s2, 3\ns_bfe_u32 s27, s26, 0x10003\ns_lshl_b32 s21, s25, 1\ns_add_u32 s21, s21, s27")
        e("s_lshr_b32 s27, s26, 4\ns_lshl_b32 s27, s27, 3\ns_and_b32 s22, s26, 7\ns_add_u32 s22, s22, s27")
        e("v_lshrrev_b32 v1, 6, v0\ns_nop 0\nv_readfirstlane_b32 s20, v1\nv_and_b32 v0, 63, v0")
        if self.span:
            e("s_memrealtime s[96:97]")
        if self.stamps:
            e("v_mov_b32 v255, 0")
            e("s_memrealtime s[92:93]\ns_waitcnt lgkmcnt(0)\nv_writelane_b32 v255, s92, 29")
        e("s_waitcnt lgkmcnt(0)")
        srd(k, 4, 40, SZ['x']); srd(k, 12, 44, WS_SIZE); srd(k, 80, 84, SZ['gw'])
        e("s_cmp_lt_u32 s22, 8\ns_cbranch_scc1 R_SSM")
        srd(k, 8, 42, SZ['w1'])
        e("s_sub_u32 s23, s22, 8\ns_mul_i32 s24, s23, 224\ns_cmp_eq_u32 s23, 7\ns_cselect_b32 s24, 1504, s24")
        e("s_lshl_b32 s27, s24, 1\ns_and_b32 s26, s27, 0xffffff80\ns_sub_u32 s28, s27, s26")
        e("s_cmp_ge_u32 s20, 4\ns_cbranch_scc0 R_FFN_C")
        self.ffn_loader()
        self.p2_loader("ffn", "P2F")
        e("s_branch FIN")
        self.label("R_SSM")
        srd(k, 8, 60, SZ['bre'])
        e("s_cmp_ge_u32 s20, 4\ns_cbranch_scc0 R_SSM_C")
        srd(k, 56, 62, SZ['bim']); srd(k, 16, 64, SZ['lre']); srd(k, 48, 66, SZ['lim']); srd(k, 52, 68, SZ['logdt'])
        self.ssm_loader()
        self.p2_loader("ssm", "P2S")
        e("s_branch FIN")
        self.label("R_SSM_C")
        self.ssm_compute()
        self.p2_compute("ssm", "P2SC")
        e("s_branch FIN")
        self.label("R_FFN_C")
        srd(k, 16, 46, SZ['b1'])
        self.ffn_compute()
        self.p2_compute("ffn", "P2FC")
        self.label("FIN")
        if self.span:
            e("s_cmp_eq_u32 s20, 0\ns_cbranch_scc0 DONE")
            e("s_waitcnt vmcnt(0)\ns_memrealtime s[92:93]\ns_load_dwordx2 s[94:95], s[0:1], %d\ns_waitcnt lgkmcnt(0)" % KA['dbg'])
            e("s_not_b32 s96, s96\nv_mov_b32 v4, s92\nv_mov_b32 v5, s96\nv_mov_b32 v6, 8\nv_mov_b32 v7, 12")
            e("s_mov_b64 exec, 1\nglobal_atomic_umax v6, v4, s[94:95]\nglobal_atomic_umax v7, v5, s[94:95]")
        self.stamp_dump()
        self.label("DONE")
        e("s_endpgm")
        out += k.text()
        out += '.section .rodata,"a"\n' + kernel_desc(KNAME, sgpr=100)
        return out

if __name__ == "__main__":
    import argparse
    ap = argparse.ArgumentParser()
    ap.add_argument("--stamps", type=int, default=0); ap.add_argument("--la", type=int, default=8)
    ap.add_argument("--touch", type=int, default=1); ap.add_argument("--prio", type=int, default=1); ap.add_argument("--slow", type=int, default=0); ap.add_argument("--span", type=int, default=0)
    a = ap.parse_args()
    print(Gen(bool(a.stamps), a.la, bool(a.touch), bool(a.prio), bool(a.slow), bool(a.span)).build())
```
